```python
import torch

def _softmax(x, axis=-1):
    return torch.softmax(x, dim=axis)
def _gelu(x):
    return torch.nn.functional.gelu(x, approximate="tanh")
def _silu(x):
    return torch.nn.functional.silu(x)
def _sigmoid(x):
    return torch.sigmoid(x)
def _layernorm(x, axis=-1, eps=1e-5):
    m = x.mean(dim=axis, keepdim=True)
    v = x.var(dim=axis, keepdim=True, unbiased=False)
    return (x - m) / torch.sqrt(v + eps)
def _scatter_add(tgt, idx, src, axis=0):
    return tgt.clone().index_add_(axis, idx, src)
def _segment_sum(src, seg, n):
    out = torch.zeros((n,) + src.shape[1:], dtype=src.dtype)
    return out.index_add_(0, seg, src)
def _pad(x, pw):
    flat = tuple(v for pair in reversed(pw) for v in pair)
    return torch.nn.functional.pad(x, flat)

kernel_name = 'recurrent_scan__sliding_block_cached__glu_gated_bilinear__decode'

def setup_inputs():

    _w = (lambda a: (lambda t: t.to(torch.bfloat16) if t.is_floating_point() else t)(torch.as_tensor(a)))
    def _A_setup():
        B, Sq, D = 2, 1, 448
        Hq, Hkv, Sk, Dh = 16, 8, 32768, 256
        assert Hq % Hkv == 0, (Hq, Hkv)
        return {
            "x": _w((lambda *s: torch.randn(*s, dtype=torch.bfloat16) * 0.2)(B, Sq, D)),
            "k_cache": _w((lambda *s: torch.randn(*s, dtype=torch.bfloat16) * 1.6)(B, Hkv, Sk, Dh)),
            "v_cache": _w((lambda *s: torch.randn(*s, dtype=torch.bfloat16) * 1.6)(B, Hkv, Sk, Dh)),
            "wq": _w((lambda *s: torch.randn(*s, dtype=torch.bfloat16) * 1.6)(D, Hq * Dh) * (D ** -0.5)),
            "wo": _w((lambda *s: torch.randn(*s, dtype=torch.bfloat16) * 1.6)(Hq * Dh, D) * ((Hq * Dh) ** -0.5)),
        }
    _A_in = _A_setup()

    def _B_setup():
        B, S, D, F = 2, 1, 448, 1792
        return {
            "x": _w((lambda *s: torch.randn(*s, dtype=torch.bfloat16) * 0.2)(B, S, D)),
            "w_gate": _w((lambda *s: torch.randn(*s, dtype=torch.bfloat16) * 0.8)(D, F) * (D ** -0.5)),
            "w_up": _w((lambda *s: torch.randn(*s, dtype=torch.bfloat16) * 0.8)(D, F) * (D ** -0.5)),
            "w_down": _w((lambda *s: torch.randn(*s, dtype=torch.bfloat16) * 0.8)(F, D) * (F ** -0.5)),
        }
    _B_in = _B_setup()

    return {
        "A_x": _A_in["x"],
        "A_k_cache": _A_in["k_cache"],
        "A_v_cache": _A_in["v_cache"],
        "A_wq": _A_in["wq"],
        "A_wo": _A_in["wo"],
        "B_x": _B_in["x"],
        "B_w_gate": _B_in["w_gate"],
        "B_w_up": _B_in["w_up"],
        "B_w_down": _B_in["w_down"],
    }

def reference(A_x, A_k_cache, A_v_cache, A_wq, A_wo, B_x, B_w_gate, B_w_up, B_w_down):
    def _A_ref(x, k_cache, v_cache, wq, wo):
        B, Sq, D = x.shape
        Hq, Dh = 16, 256
        Hkv, Sk = k_cache.shape[1], k_cache.shape[2]
        W = min(4096, max(256, Sk // 4))
        rep = Hq // Hkv
        q = (lambda x, *d: x.permute(*d))((x @ wq).reshape(B, Sq, Hq, Dh), 0, 2, 1, 3)
        k = (lambda x, n, axis: torch.repeat_interleave(x, n, dim=axis))(k_cache[:, :, Sk - W:, :], rep, axis=1)
        v = (lambda x, n, axis: torch.repeat_interleave(x, n, dim=axis))(v_cache[:, :, Sk - W:, :], rep, axis=1)
        scores = torch.einsum("bhqd,bhkd->bhqk", q, k) * (Dh ** -0.5)
        p = _softmax(scores, axis=-1)
        o = torch.einsum("bhqk,bhkd->bhqd", p, v)
        return (lambda x, *d: x.permute(*d))(o, 0, 2, 1, 3).reshape(B, Sq, Hq * Dh) @ wo

    def _B_ref(x, w_gate, w_up, w_down):
        g = torch.einsum("bsd,df->bsf", x, w_gate)
        u = torch.einsum("bsd,df->bsf", x, w_up)
        h = g * u
        return torch.einsum("bsf,fd->bsd", h, w_down)

    x = A_x
    xn = _layernorm(x, axis=-1)
    s = _A_ref(xn, A_k_cache, A_v_cache, A_wq, A_wo)
    g = _silu(_B_ref(xn, B_w_gate, B_w_up, B_w_down))
    return x + s * g
```

```python
KNAME = 'recurrent_scan__sliding_block_cached__glu_gated_bilinear__decode'
HEADER = '''; Kernarg layout for this problem (96 bytes, ptrs only, base s[0:1]):
'''
class Asm:
    def __init__(self):
        self.lines = []
    def __call__(self, s=''):
        for l in s.split('\n'):
            self.lines.append('    ' + l.strip() if l.strip() and not l.strip().endswith(':') else l.strip())
    def label(self, n):
        self.lines.append(n + ':')
    def text(self):
        return '\n'.join(self.lines) + '\n'

def kernel_file(body, grid, block, lds, vgpr, sgpr=102, accum=None, name=None):
    name = name or (KNAME + '_kernel')
    if accum is None:
        accum = (vgpr + 3) // 4 * 4
    s = HEADER
    s += '; @launch grid=(%d,1,1) block=(%d,1,1) lds=%d\n' % (grid, block, lds)
    s += '.amdgcn_target "amdgcn-amd-amdhsa--gfx950"\n.text\n'
    s += '.globl %s\n.p2align 8\n.type %s,@function\n%s:\n' % (name, name, name)
    s += body
    s += '.section .rodata,"a"\n.p2align 6\n.amdhsa_kernel %s\n' % name
    s += '  .amdhsa_next_free_vgpr %d\n  .amdhsa_next_free_sgpr %d\n  .amdhsa_accum_offset %d\n' % (vgpr, sgpr, accum)
    s += '  .amdhsa_group_segment_fixed_size 0\n  .amdhsa_kernarg_size 96\n  .amdhsa_user_sgpr_count 2\n'
    s += '  .amdhsa_user_sgpr_kernarg_segment_ptr 1\n  .amdhsa_system_sgpr_workgroup_id_x 1\n'
    s += '  .amdhsa_float_denorm_mode_32 3\n'
    s += '.end_amdhsa_kernel\n'
    return s
```

```python
import re
REG = re.compile(r'^(-|\|)?(abs\()?([vsa])(\d+)\)?\|?$')
RNG = re.compile(r'^(-|\|)?([vsa])\[(\d+):(\d+)\]\|?$')
TRANS = ('v_exp_f32', 'v_log_f32', 'v_rcp_f32', 'v_rsq_f32', 'v_sqrt_f32', 'v_sin_f32', 'v_cos_f32', 'v_rcp_iflag_f32')

def regs_of(op):
    op = op.strip()
    m = RNG.match(op)
    if m: return {(m.group(2), i) for i in range(int(m.group(3)), int(m.group(4)) + 1)}
    m = REG.match(op)
    if m: return {(m.group(3), int(m.group(4)))}
    if op == 'vcc': return {('s', 'vcc')}
    if op in ('vcc_lo', 'vcc_hi'): return {('s', 'vcc')}
    if op == 'exec': return {('s', 'exec')}
    if op == 'm0': return {('s', 'm0')}
    return set()

class Ins:
    def __init__(self, text):
        self.text = text
        t = text.split(';')[0].strip()
        parts = t.split(None, 1)
        self.mn = parts[0]
        rest = parts[1] if len(parts) > 1 else ''
        ops = []
        depth = 0; cur = ''
        for ch in rest:
            if ch == '[': depth += 1
            if ch == ']': depth -= 1
            if ch == ',' and depth == 0:
                ops.append(cur.strip()); cur = ''
            else: cur += ch
        if cur.strip(): ops.append(cur.strip())
        self.mods = ''
        if ops:
            last = ops[-1].split()
            ops[-1] = last[0]
            self.mods = ' '.join(last[1:])
        self.ops = ops
        mn = self.mn
        self.mfma = mn.startswith('v_mfma')
        self.valu = mn.startswith('v_') and not self.mfma
        self.vmem = mn.startswith(('buffer_', 'global_', 'flat_'))
        self.ds = mn.startswith('ds_')
        self.salu = mn.startswith('s_')
        self.dpp = '_dpp' in mn or 'quad_perm' in self.mods or 'row_' in self.mods
        self.trans = any(mn.startswith(x) for x in TRANS)
        self.perml = mn.startswith('v_permlane')
        self.lds_dma = self.vmem and re.search(r'\blds\b', self.mods) is not None
        R = [regs_of(o) for o in ops]
        self.w = set(); self.r = set()
        if self.mfma:
            self.w = R[0]; self.r = R[1] | R[2] | R[3]; self.srcc = R[3]; self.ab = R[1] | R[2]
        elif self.valu:
            if self.perml and 'swap' in mn:
                self.w = R[0] | R[1]; self.r = R[0] | R[1]
            elif mn.startswith('v_cmp'):
                self.w = R[0]; self.r = set().union(*R[1:])
            elif mn.startswith(('v_add_co', 'v_sub_co', 'v_addc_co', 'v_subb_co', 'v_div_scale', 'v_mad_u64')):
                self.w = R[0] | R[1]; self.r = set().union(*R[2:])
            else:
                self.w = R[0]; self.r = set().union(*R[1:]) if len(R) > 1 else set()
                if mn.startswith(('v_fmac', 'v_dot2c', 'v_pk_fmac', 'v_mac', 'v_writelane')) or self.dpp or 'd16' in mn: self.r |= R[0]
                if mn.startswith('v_cndmask') and len(ops) == 3: self.r |= {('s', 'vcc')}
                if mn.startswith('v_cndmask_b32') and len(R) == 3: self.r |= {('s', 'vcc')}
            self.r |= {('s', 'exec')} if False else set()
        elif self.vmem:
            st = 'store' in mn or ('atomic' in mn and 'sc0' not in self.mods)
            if st or self.lds_dma:
                self.r = set().union(*R)
                if self.lds_dma: self.r |= {('s', 'm0')}
            else:
                self.w = R[0]; self.r = set().union(*R[1:])
            self.store = 'store' in mn or 'atomic' in mn
            self.wide = self.store and ('x3' in mn or 'x4' in mn)
            if self.store:
                self.data = R[1] if mn.startswith('global') else R[0]
        elif self.ds:
            if mn.startswith(('ds_write', 'ds_add', 'ds_max', 'ds_min', 'ds_or', 'ds_and')) and 'rtn' not in mn:
                self.r = set().union(*R)
            else:
                self.w = R[0]; self.r = set().union(*R[1:])
        elif self.salu:
            if mn.startswith(('s_cmp', 's_bitcmp', 's_cbranch', 's_branch', 's_waitcnt', 's_nop', 's_barrier', 's_sleep', 's_setprio', 's_endpgm')):
                self.r = set().union(*R) if R else set()
            else:
                self.w = R[0] if R else set(); self.r = set().union(*R[1:]) if len(R) > 1 else set()
                if 'saveexec' in mn: self.w |= {('s', 'exec')}
    def states(self):
        if self.mn == 's_nop': return int(self.ops[0], 0) + 1
        return 1

def need(p, c):
    n = 0
    pv = {x for x in p.w if x[0] in 'va'}
    ps = {x for x in p.w if x[0] == 's'}
    cv_r = {x for x in c.r if x[0] in 'va'}
    cv_w = {x for x in c.w if x[0] in 'va'}
    if p.valu:
        if c.mfma and pv & c.r: n = max(n, 2)
        if c.valu and c.dpp and pv & cv_r: n = max(n, 2)
        if c.perml and pv & cv_r: n = max(n, 2)
        if c.mn.startswith(('v_readlane', 'v_readfirstlane')) and pv & cv_r: n = max(n, 1)
        if p.trans and c.valu and not c.trans and pv & (cv_r | cv_w): n = max(n, 1)
        if p.trans and (c.mfma) and pv & c.r: n = max(n, 2)
        if ps:
            if c.vmem and ps & c.r: n = max(n, 5)
            if c.valu and ps & c.r:
                n = max(n, 4 if c.mn.startswith(('v_readlane', 'v_writelane')) else 2)
            if c.mfma and ps & c.r: n = max(n, 2)
            if c.salu and ps & c.r: n = max(n, 1)
    if p.mfma:
        if c.mfma:
            if p.w & c.srcc and not (p.w == c.srcc): n = max(n, 6)
            if p.w & c.ab: n = max(n, 8)
            if p.w & c.w and not (p.w == c.w): n = max(n, 6)
        elif (c.valu or c.vmem or c.ds) and p.w & (c.r | c.w): n = max(n, 8)
        if c.valu and p.srcc & cv_w: n = max(n, 3)
    if p.salu and ('s', 'm0') in p.w and c.lds_dma: n = max(n, 1)
    if p.salu and ('s', 'exec') in p.w and c.valu and c.dpp: n = max(n, 1)
    if p.vmem and getattr(p, 'store', False) and getattr(p, 'wide', False):
        if c.valu and p.data & cv_w: n = max(n, 2)
        elif p.data & cv_w: n = max(n, 1)
    return n

class Asm:
    def __init__(self):
        self.lines = []
        self.hist = []
        self.nops = 0
    def __call__(self, s=''):
        for l in s.split('\n'):
            l = l.strip()
            if not l: continue
            if l.startswith(';'):
                self.lines.append('    ' + l); continue
            if l.endswith(':'):
                self.label(l[:-1]); continue
            if l.startswith('.'):
                self.lines.append(l); continue
            self.emit(l)
    def emit(self, l):
        c = Ins(l)
        req = 0; dist = 0
        for p in reversed(self.hist):
            k = need(p, c)
            if k - dist > req: req = k - dist
            dist += p.states()
            if dist >= 12: break
        if req > 0:
            self.lines.append('    s_nop %d' % (req - 1)); self.hist.append(Ins('s_nop %d' % (req - 1))); self.nops += 1
        self.lines.append('    ' + l); self.hist.append(c)
        if len(self.hist) > 40: self.hist = self.hist[-30:]
    def label(self, n):
        self.lines.append(n + ':')
    def flush(self, n=8):
        self.emit('s_nop %d' % (n - 1))
    def text(self):
        return '\n'.join(self.lines) + '\n'
```

```python
import sys
from hz import Asm
from asmlib import KNAME, HEADER

EPOCH = 0x0
FLAGS = 0x1000
QP = 0x10000
GU = 0x30000
OP = 0x50000
ML = 0xD0000
YP = 0xD8000
FP = 0xF8000
STAMP = 0x200000
L0 = 0x20000
ZERO = 0; CNT = 64
C_K = CNT + 0; C_CLR = CNT + 4; C_Q = CNT + 8; C_M = CNT + 12; C_P = CNT + 16; C_R = CNT + 20; C_F = CNT + 24; C_VI = CNT + 28
TT = 128; MX = 160; MS = 192
XN = 256; QB = 2048; PP = 3072; HB = 4096; OB = 4352; CO = 4864
LDS_BYTES = L0 + 5120
LOG2E = 0x3fb8aa3b
POLL_MAX = 1 << 16

class Cfg:
    depth = 6
    stamps = False
    nt = 'nt'
    dbg = False

def v(a, n=1): return 'v%d' % a if n == 1 else 'v[%d:%d]' % (a, a + n - 1)
def s(a, n=1): return 's%d' % a if n == 1 else 's[%d:%d]' % (a, a + n - 1)

S_X, S_K, S_V, S_WQ, S_WO, S_BX, S_WG, S_WU, S_WD, S_OUT, S_DBG, S_WS = 4, 6, 8, 10, 12, 14, 16, 18, 20, 22, 24, 26
S_W, S_G, S_J, S_B, S_S = 28, 29, 30, 31, 32
S_LO, S_HI = 33, 34
S_T0 = 36
S_SRD = 48
S_SRD2 = 52
S_P = 56
S_ST = 72
S_EXS = 88
S_CNT = 90
S_TL, S_TH = 92, 93

def gen(cfg):
    a = Asm()
    nst = [0]
    def stamp(i, wait=False):
        if cfg.stamps:
            a('s_memrealtime %s' % s(S_ST + 2 * i, 2))
            if wait: a('s_waitcnt lgkmcnt(0)')
    def stamps_out(vt):
        if not cfg.stamps: return
        a('s_waitcnt lgkmcnt(0) vmcnt(0)')
        a('s_lshl_b32 %s, s2, 3' % s(S_T0))
        a('s_add_u32 %s, %s, %s' % (s(S_T0), s(S_T0), s(S_W)))
        a('s_lshl_b32 %s, %s, 6' % (s(S_T0), s(S_T0)))
        a('s_add_u32 %s, %s, %d' % (s(S_T0), s(S_T0), STAMP))
        a('s_mov_b64 exec, 1')
        a('v_mov_b32 %s, %s' % (v(vt), s(S_T0)))
        for i in range(16):
            a('v_mov_b32 %s, %s' % (v(vt + 2 + i), s(S_ST + i)))
        for i in range(4):
            a('global_store_dwordx4 %s, %s, %s offset:%d' % (v(vt), v(vt + 2 + 4 * i, 4), s(S_WS, 2), 16 * i))
    def lds_signal(vL, off, vone):
        a('s_mov_b64 %s, exec' % s(S_EXS, 2))
        a('s_mov_b64 exec, 1')
        a('ds_add_u32 %s, %s offset:%d' % (v(vL), v(vone), off))
        a('s_mov_b64 exec, %s' % s(S_EXS, 2))
    uid = [0]
    def lds_wait(vL, off, n, vt):
        uid[0] += 1
        L = 'L_lw%d' % uid[0]
        a('s_mov_b32 %s, 0' % s(S_T0 + 10))
        a.label(L)
        a('ds_read_b32 %s, %s offset:%d' % (v(vt), v(vL), off))
        a('s_add_u32 %s, %s, 1' % (s(S_T0 + 10), s(S_T0 + 10)))
        a('s_waitcnt lgkmcnt(0)')
        a('v_readfirstlane_b32 %s, %s' % (s(S_T0 + 11), v(vt)))
        a('s_cmp_ge_u32 %s, %d' % (s(S_T0 + 11), n))
        a('s_cbranch_scc1 %s_d' % L)
        a('s_sleep 1')
        a('s_cmp_lt_u32 %s, 0x400000' % s(S_T0 + 10))
        a('s_cbranch_scc1 %s' % L)
        a.label(L + '_d')
    def red16(op, r):
        for m in ('quad_perm:[1,0,3,2]', 'quad_perm:[2,3,0,1]', 'row_half_mirror', 'row_mirror'):
            a('%s_dpp %s, %s, %s %s row_mask:0xf bank_mask:0xf' % (op, v(r), v(r), v(r), m))
    def red_x16(op, r, t):
        a('v_mov_b32 %s, %s' % (v(t), v(r)))
        a('v_permlane16_swap_b32 %s, %s' % (v(r), v(t)))
        a('%s %s, %s, %s' % (op, v(r), v(r), v(t)))
    def red_x32(op, r, t):
        a('v_mov_b32 %s, %s' % (v(t), v(r)))
        a('v_permlane32_swap_b32 %s, %s' % (v(r), v(t)))
        a('%s %s, %s, %s' % (op, v(r), v(r), v(t)))

    a('s_cmp_ge_u32 s2, 256')
    a('s_cbranch_scc1 L_end')
    a('s_load_dwordx16 s[4:19], s[0:1], 0')
    a('s_load_dwordx8 s[20:27], s[0:1], 64')
    if cfg.stamps:
        for i in range(16): a('s_mov_b32 %s, 0' % s(S_ST + i))
    stamp(0)
    a('v_lshrrev_b32 v1, 6, v0')
    a('v_and_b32 v0, 63, v0')
    a('s_and_b32 %s, s2, 7' % s(S_G))
    a('v_readfirstlane_b32 %s, v1' % s(S_W))
    a('s_lshr_b32 %s, s2, 3' % s(S_J))
    a('s_lshr_b32 %s, %s, 4' % (s(S_B), s(S_J)))
    a('s_and_b32 %s, %s, 15' % (s(S_S), s(S_J)))
    a('s_mov_b32 %s, 0x05040100' % s(S_LO))
    a('s_mov_b32 %s, 0x07060302' % s(S_HI))
    a('v_mov_b32 v1, 0x%x' % L0)
    a('v_mov_b32 v2, 1')
    a('s_cmp_ge_u32 %s, 4' % s(S_W))
    a('s_cbranch_scc1 L_service')

    VL, VONE = 1, 2
    vRho, vC32, vR0, vK0, vK1, vV = 3, 4, 5, 6, 7, 8
    vT = 10
    vA = 16
    vACC = 32
    vBB = 64
    vVD = 96
    a('v_lshrrev_b32 %s, 5, v0' % v(vRho))
    a('v_and_b32 %s, 31, v0' % v(vC32))
    a('s_lshl_b32 %s, %s, 2' % (s(S_T0), s(S_W)))
    a('v_add_u32 %s, %s, %s' % (v(vR0), s(S_T0), v(vRho)))
    a('v_xor_b32 %s, %s, %s' % (v(vT), v(vC32), v(vR0)))
    a('v_lshlrev_b32 %s, 4, %s' % (v(vT), v(vT)))
    a('v_lshl_add_u32 %s, %s, 9, %s' % (v(vK0), v(vR0), v(vT)))
    a('v_add_u32 %s, 2, %s' % (v(vT + 1), v(vR0)))
    a('v_xor_b32 %s, %s, %s' % (v(vT), v(vC32), v(vT + 1)))
    a('v_lshlrev_b32 %s, 4, %s' % (v(vT), v(vT)))
    a('v_lshl_add_u32 %s, %s, 9, %s' % (v(vK1), v(vR0), v(vT)))
    a('v_lshlrev_b32 %s, 4, %s' % (v(vT), v(vC32)))
    a('v_lshl_add_u32 %s, %s, 9, %s' % (v(vV), v(vR0), v(vT)))
    a('s_lshl_b32 %s, %s, 3' % (s(S_T0 + 1), s(S_B)))
    a('s_add_u32 %s, %s, %s' % (s(S_T0 + 1), s(S_T0 + 1), s(S_G)))
    a('s_lshl_b32 %s, %s, 24' % (s(S_T0 + 1), s(S_T0 + 1)))
    a('s_add_u32 %s, %s, 14680064' % (s(S_T0 + 1), s(S_T0 + 1)))
    a('s_lshl_b32 %s, %s, 11' % (s(S_P), s(S_W)))
    a('s_waitcnt lgkmcnt(0)')
    a('s_add_u32 %s, %s, %s' % (s(S_SRD), s(S_K), s(S_T0 + 1)))
    a('s_addc_u32 %s, %s, 0' % (s(S_SRD + 1), s(S_K + 1)))
    a('s_mov_b32 %s, 2097152' % s(S_SRD + 2))
    a('s_mov_b32 %s, 0x00020000' % s(S_SRD + 3))
    a('s_add_u32 %s, %s, %s' % (s(S_SRD2), s(S_V), s(S_T0 + 1)))
    a('s_addc_u32 %s, %s, 0' % (s(S_SRD2 + 1), s(S_V + 1)))
    a('s_mov_b32 %s, 2097152' % s(S_SRD2 + 2))
    a('s_mov_b32 %s, 0x00020000' % s(S_SRD2 + 3))
    cnt = 0
    D = cfg.depth
    def soff(c):
        a('s_add_u32 %s, %s, %d' % (s(S_T0), s(S_S), c))
        a('s_and_b32 %s, %s, 15' % (s(S_T0), s(S_T0)))
        a('s_lshl_b32 %s, %s, 13' % (s(S_T0), s(S_T0)))
        a('s_add_u32 %s, %s, %d' % (s(S_T0), s(S_T0), c << 17))
    barrier_done = False
    def throttle():
        nonlocal cnt, barrier_done
        cnt += 1
        if cnt == D and not barrier_done:
            a('s_barrier'); barrier_done = True
        if cnt > D:
            a('s_waitcnt vmcnt(%d)' % D)
    for c in range(16):
        a('s_add_u32 m0, %s, %d' % (s(S_P), c * 8192))
        soff(c)
        a('buffer_load_dwordx4 %s, %s, %s offen %s lds' % (v(vK0), s(S_SRD, 4), s(S_T0), cfg.nt))
        throttle()
        a('buffer_load_dwordx4 %s, %s, %s offen offset:1024 %s lds' % (v(vK1), s(S_SRD, 4), s(S_T0), cfg.nt))
        throttle()
    for c in range(16):
        soff(c)
        for h in range(2):
            r = vVD + (2 * c + h) * 4
            a('buffer_load_dwordx4 %s, %s, %s, %s offen %s%s' % (v(r, 4), v(vV), s(S_SRD2, 4), s(S_T0), 'offset:1024 ' if h else '', cfg.nt))
            throttle()
            if cnt == 32 + D:
                stamp(1)
                lds_signal(VL, C_K, VONE)
    lds_signal(VL, C_VI, VONE)
    stamp(2)
    a('v_and_b32 %s, 15, v0' % v(vT))
    a('v_lshrrev_b32 %s, 4, v0' % v(vT + 1))
    a('v_lshrrev_b32 %s, 1, %s' % (v(vT + 2), v(vT)))
    a('v_lshl_add_u32 %s, %s, 2, %s' % (v(vT + 2), v(vT + 2), s(S_W)))
    a('v_lshrrev_b32 %s, 1, %s' % (v(vT + 3), v(vT + 1)))
    a('v_lshl_add_u32 %s, %s, 1, %s' % (v(vT + 2), v(vT + 2), v(vT + 3)))
    a('v_lshlrev_b32 %s, 6, %s' % (v(vT + 2), v(vT + 2)))
    a('v_add_u32 %s, %d, %s' % (v(vT + 2), L0 + PP, v(vT + 2)))
    a('v_xor_b32 %s, %s, %s' % (v(vT + 3), v(vT), v(vT + 1)))
    a('v_and_b32 %s, 1, %s' % (v(vT + 3), v(vT + 3)))
    a('v_lshl_or_b32 %s, %s, 2, %s' % (v(vT + 3), v(vT + 3), v(vT)))
    a('v_cmp_gt_u32 vcc, 4, %s' % v(vT + 3))
    a('v_mov_b32 %s, %d' % (v(vT + 4), L0 + ZERO))
    a('v_cndmask_b32 %s, %s, %s, vcc' % (v(vT + 2), v(vT + 4), v(vT + 2)))
    a('v_add_u32 %s, 16, %s' % (v(vT + 5), v(vT + 2)))
    for i in range(32): a('v_mov_b32 %s, 0' % v(vACC + i))
    lds_wait(VL, C_P, 4, vT)
    stamp(3)
    for q in range(4):
        a('ds_read_b128 %s, %s offset:%d' % (v(vA + 4 * q, 4), v(vT + 2), 16 * q))
    for q in range(4):
        for m in range(4):
            c = 4 * q + m
            n = 30 - 2 * c
            if n < D + 1: a('s_waitcnt vmcnt(%d)' % n)
            ra = vVD + (2 * c) * 4; rb = ra + 4
            for t in range(4):
                a('v_perm_b32 %s, %s, %s, %s' % (v(vBB + (2 * t) * 4 + m), v(rb + t), v(ra + t), s(S_LO)))
                a('v_perm_b32 %s, %s, %s, %s' % (v(vBB + (2 * t + 1) * 4 + m), v(rb + t), v(ra + t), s(S_HI)))
        if q == 0: a('s_waitcnt lgkmcnt(0)')
        for jj in range(8):
            a('v_mfma_f32_16x16x32_bf16 %s, %s, %s, %s' % (v(vACC + 4 * jj, 4), v(vA + 4 * q, 4), v(vBB + 4 * jj, 4), v(vACC + 4 * jj, 4)))
    stamp(4)
    a('v_lshlrev_b32 %s, 4, v0' % v(vT))
    a('s_lshl_b32 %s, %s, 11' % (s(S_T0), s(S_W)))
    a('v_add_u32 %s, %s, %s' % (v(vT), s(S_T0), v(vT)))
    a('s_mov_b64 exec, 0xffff')
    for jj in range(8):
        a('ds_write_b128 %s, %s offset:%d' % (v(vT), v(vACC + 4 * jj, 4), jj * 256))
    a('s_mov_b64 exec, -1')
    a('s_waitcnt lgkmcnt(0)')
    lds_signal(VL, C_R, VONE)
    a('s_lshl_b32 %s, %s, 2' % (s(S_T0), s(S_G)))
    a('s_add_u32 %s, %s, %s' % (s(S_T0), s(S_T0), s(S_W)))
    a('s_lshl_b32 %s, %s, 5' % (s(S_T0), s(S_T0)))
    a('s_add_u32 %s, %s, %s' % (s(S_T0), s(S_T0), s(S_J)))
    a('s_lshl_b32 %s, %s, 9' % (s(S_T0), s(S_T0)))
    a('s_add_u32 %s, %s, %d' % (s(S_T0), s(S_T0), OP))
    a('v_lshlrev_b32 %s, 3, v0' % v(vT + 1))
    a('v_add_u32 %s, %s, %s' % (v(vT + 1), s(S_T0), v(vT + 1)))
    a('v_lshlrev_b32 %s, 5, v0' % v(vT + 2))
    a('s_lshl_b32 %s, %s, 2' % (s(S_T0 + 1), s(S_W)))
    a('v_add_u32 %s, %s, %s' % (v(vT + 2), s(S_T0 + 1), v(vT + 2)))
    lds_wait(VL, C_R, 4, vT + 3)
    for w in range(4):
        a('ds_read_b32 %s, %s offset:%d' % (v(vBB + 2 * w), v(vT + 2), w * 2048))
        a('ds_read_b32 %s, %s offset:%d' % (v(vBB + 2 * w + 1), v(vT + 2), w * 2048 + 16))
    a('s_waitcnt lgkmcnt(0)')
    for e in range(2):
        a('v_add_f32 %s, %s, %s' % (v(vBB + e), v(vBB + e), v(vBB + 2 + e)))
        a('v_add_f32 %s, %s, %s' % (v(vBB + 4 + e), v(vBB + 4 + e), v(vBB + 6 + e)))
    for e in range(2):
        a('v_add_f32 %s, %s, %s' % (v(vBB + e), v(vBB + e), v(vBB + 4 + e)))
    for e in range(2):
        a('v_min_u32 %s, -2, %s' % (v(vBB + e), v(vBB + e)))
    a('global_store_dwordx2 %s, %s, %s sc1' % (v(vT + 1), v(vBB, 2), s(S_WS, 2)))
    stamp(5)
    stamps_out(vBB + 8)
    a('s_endpgm')

    a.label('L_service')
    a('s_setprio 2')
    for k in range(16): a('s_mov_b32 %s, 0' % s(S_P + k))
    a('s_cmp_eq_u32 %s, 7' % s(S_W))
    a('s_cbranch_scc1 L_w7')
    a('s_cmp_eq_u32 %s, 6' % s(S_W))
    a('s_cbranch_scc1 L_w6')

    vN, vGL, vOff, vT = 3, 4, 5, 6
    vX = 16
    vE = 24
    vW = 40
    vA1 = 96
    vB1 = 112
    vAC = 128
    a('v_and_b32 %s, 15, v0' % v(vN))
    a('v_lshrrev_b32 %s, 4, v0' % v(vGL))
    a('v_lshrrev_b32 %s, 5, v0' % v(vT))
    a('v_mul_u32_u24 %s, 896, %s' % (v(vT), v(vT)))
    a('v_and_b32 %s, 31, v0' % v(vT + 1))
    a('v_mul_u32_u24 %s, 28, %s' % (v(vT + 1), v(vT + 1)))
    a('v_add_u32 %s, %s, %s' % (v(vT), v(vT), v(vT + 1)))
    sStride, sRB, sCol, sOutB, sBStr, sSo, sS13, sHas = S_P, S_P + 1, S_P + 2, S_P + 3, S_P + 4, S_P + 5, S_P + 6, S_P + 7
    a('s_waitcnt lgkmcnt(0)')
    a('global_load_dwordx4 %s, %s, %s' % (v(vX, 4), v(vT), s(S_X, 2)))
    a('global_load_dwordx3 %s, %s, %s offset:16' % (v(vX + 4, 3), v(vT), s(S_X, 2)))
    a('s_cmp_eq_u32 %s, 5' % s(S_W))
    a('s_cbranch_scc1 L_p5')
    a('s_mov_b32 %s, 8192' % s(sStride))
    a('s_lshr_b32 %s, %s, 3' % (s(sRB), s(S_J)))
    a('s_and_b32 %s, %s, 7' % (s(S_T0), s(S_J)))
    a('s_lshl_b32 %s, %s, 10' % (s(sCol), s(S_G)))
    a('s_lshl_b32 %s, %s, 7' % (s(S_T0 + 1), s(S_T0)))
    a('s_add_u32 %s, %s, %s' % (s(sCol), s(sCol), s(S_T0 + 1)))
    a('s_mov_b32 %s, %s' % (s(S_SRD), s(S_WQ)))
    a('s_mov_b32 %s, %s' % (s(S_SRD + 1), s(S_WQ + 1)))
    a('s_mov_b32 %s, 3670016' % s(S_SRD + 2))
    a('s_lshl_b32 %s, %s, 3' % (s(sOutB), s(S_G)))
    a('s_add_u32 %s, %s, %s' % (s(sOutB), s(sOutB), s(sRB)))
    a('s_lshl_b32 %s, %s, 3' % (s(sOutB), s(sOutB)))
    a('s_add_u32 %s, %s, %s' % (s(sOutB), s(sOutB), s(S_T0)))
    a('s_lshl_b32 %s, %s, 8' % (s(sOutB), s(sOutB)))
    a('s_add_u32 %s, %s, %d' % (s(sOutB), s(sOutB), QP))
    a('s_mov_b32 %s, 8192' % s(sBStr))
    a('s_mov_b32 %s, 1' % s(sHas))
    a('s_branch L_p45')
    a.label('L_p5')
    a('s_mov_b32 %s, 3584' % s(sStride))
    a('s_and_b32 %s, %s, 3' % (s(sRB), s(S_J)))
    a('s_lshr_b32 %s, %s, 3' % (s(S_T0), s(S_J)))
    a('s_lshl_b32 %s, %s, 2' % (s(sCol), s(S_G)))
    a('s_add_u32 %s, %s, %s' % (s(sCol), s(sCol), s(S_T0)))
    a('s_lshl_b32 %s, %s, 7' % (s(sCol), s(sCol)))
    a('s_bitcmp1_b32 %s, 2' % s(S_J))
    a('s_cselect_b32 %s, %s, %s' % (s(S_SRD), s(S_WU), s(S_WG)))
    a('s_cselect_b32 %s, %s, %s' % (s(S_SRD + 1), s(S_WU + 1), s(S_WG + 1)))
    a('s_mov_b32 %s, 1605632' % s(S_SRD + 2))
    a('s_lshl_b32 %s, %s, 5' % (s(sOutB), s(S_G)))
    a('s_add_u32 %s, %s, %s' % (s(sOutB), s(sOutB), s(S_J)))
    a('s_lshl_b32 %s, %s, 9' % (s(sOutB), s(sOutB)))
    a('s_add_u32 %s, %s, %d' % (s(sOutB), s(sOutB), GU))
    a('s_mov_b32 %s, 256' % s(sBStr))
    a('s_cmp_lt_u32 %s, 7' % s(S_G))
    a('s_cselect_b32 %s, 1, 0' % s(sHas))
    a.label('L_p45')
    a('s_mov_b32 %s, 0x00020000' % s(S_SRD + 3))
    a('s_cmp_eq_u32 %s, 0' % s(sHas))
    a('s_cbranch_scc1 L_s1_skip')
    a('s_mul_i32 %s, %s, 112' % (s(S_T0), s(sRB)))
    a('v_lshl_add_u32 %s, %s, 2, %s' % (v(vOff), v(vGL), s(S_T0)))
    a('v_mul_lo_u32 %s, %s, %s' % (v(vOff), v(vOff), s(sStride)))
    a('v_lshl_add_u32 %s, %s, 3, %s' % (v(vOff), v(vN), v(vOff)))
    a('v_add_u32 %s, %s, %s' % (v(vOff), s(sCol), v(vOff)))
    a('s_mul_i32 %s, %s, 13' % (s(sS13), s(sStride)))
    a('s_mov_b32 %s, 0' % s(sSo))
    for i in range(28):
        a('buffer_load_dwordx2 %s, %s, %s, %s offen %s' % (v(vW + 2 * i, 2), v(vOff), s(S_SRD, 4), s(sSo), cfg.nt))
        if i < 27:
            a('s_add_u32 %s, %s, %s' % (s(sSo), s(sSo), s(sS13) if (i & 3) == 3 else s(sStride)))
    a('s_barrier')
    a('s_waitcnt vmcnt(28)')
    for k in range(7):
        a('v_lshlrev_b32 %s, 16, %s' % (v(vE + 2 * k), v(vX + k)))
        a('v_and_b32 %s, 0xffff0000, %s' % (v(vE + 2 * k + 1), v(vX + k)))
    vS, vM, vMU, vVar, vR = vT + 2, vT + 3, vT + 4, vT + 5, vT + 6
    a('v_add_f32 %s, %s, %s' % (v(vS), v(vE), v(vE + 1)))
    for k in range(2, 14): a('v_add_f32 %s, %s, %s' % (v(vS), v(vS), v(vE + k)))
    red16('v_add_f32', vS); red_x16('v_add_f32', vS, vT + 7)
    c448 = 0x3b124925
    a('s_mov_b32 %s, 0x%x' % (s(S_T0), c448))
    a('s_mov_b32 %s, 0xc3e00000' % s(S_T0 + 1))
    def div448(dst, src, t):
        a('v_mul_f32 %s, %s, %s' % (v(dst), s(S_T0), v(src)))
        a('v_fma_f32 %s, %s, %s, %s' % (v(t), v(dst), s(S_T0 + 1), v(src)))
        a('v_fma_f32 %s, %s, %s, %s' % (v(dst), v(t), s(S_T0), v(dst)))
    div448(vMU, vS, vT + 7)
    a('v_cvt_pk_bf16_f32 %s, %s, %s' % (v(vM), v(vMU), v(vMU)))
    a('v_lshlrev_b32 %s, 16, %s' % (v(vM), v(vM)))
    a('v_sub_f32 %s, %s, %s' % (v(vT + 7), v(vE), v(vMU)))
    a('v_mul_f32 %s, %s, %s' % (v(vVar), v(vT + 7), v(vT + 7)))
    for k in range(1, 14):
        a('v_sub_f32 %s, %s, %s' % (v(vT + 7), v(vE + k), v(vMU)))
        a('v_fmac_f32 %s, %s, %s' % (v(vVar), v(vT + 7), v(vT + 7)))
    red16('v_add_f32', vVar); red_x16('v_add_f32', vVar, vT + 7)
    div448(vS, vVar, vT + 7)
    a('v_cvt_pk_bf16_f32 %s, %s, %s' % (v(vS), v(vS), v(vS)))
    a('v_lshlrev_b32 %s, 16, %s' % (v(vS), v(vS)))
    a('v_add_f32 %s, 0x3727c5ac, %s' % (v(vS), v(vS)))
    a('v_cvt_pk_bf16_f32 %s, %s, %s' % (v(vS), v(vS), v(vS)))
    a('v_lshlrev_b32 %s, 16, %s' % (v(vS), v(vS)))
    a('v_sqrt_f32 %s, %s' % (v(vS), v(vS)))
    a('v_cvt_pk_bf16_f32 %s, %s, %s' % (v(vS), v(vS), v(vS)))
    a('v_lshlrev_b32 %s, 16, %s' % (v(vS), v(vS)))
    a('v_rcp_f32 %s, %s' % (v(vR), v(vS)))
    for k in range(0, 14, 2):
        a('v_sub_f32 %s, %s, %s' % (v(vE + k), v(vE + k), v(vM)))
        a('v_sub_f32 %s, %s, %s' % (v(vE + k + 1), v(vE + k + 1), v(vM)))
        a('v_cvt_pk_bf16_f32 %s, %s, %s' % (v(vT + 7), v(vE + k), v(vE + k + 1)))
        a('v_lshlrev_b32 %s, 16, %s' % (v(vE + k), v(vT + 7)))
        a('v_and_b32 %s, 0xffff0000, %s' % (v(vE + k + 1), v(vT + 7)))
        for e in (vE + k, vE + k + 1):
            a('v_mul_f32 %s, %s, %s' % (v(vT + 8), v(e), v(vR)))
            a('v_fma_f32 %s, -%s, %s, %s' % (v(vT + 9), v(vT + 8), v(vS), v(e)))
            a('v_fma_f32 %s, %s, %s, %s' % (v(e), v(vT + 9), v(vR), v(vT + 8)))
        a('v_cvt_pk_bf16_f32 %s, %s, %s' % (v(vX + k // 2), v(vE + k), v(vE + k + 1)))
    a('v_add_u32 %s, %d, %s' % (v(vT), L0 + XN, v(vT)))
    for k in range(7):
        a('ds_write_b32 %s, %s offset:%d' % (v(vT), v(vX + k), 4 * k))
    a('s_mul_i32 %s, %s, 224' % (s(S_T0), s(sRB)))
    a('v_mul_u32_u24 %s, 896, %s' % (v(vT + 1), v(vN)))
    a('v_lshl_add_u32 %s, %s, 3, %s' % (v(vT + 1), v(vGL), v(vT + 1)))
    a('v_add_u32 %s, %s, %s' % (v(vT + 1), s(S_T0), v(vT + 1)))
    a('v_add_u32 %s, %d, %s' % (v(vT + 1), L0 + XN, v(vT + 1)))
    a('v_cmp_gt_u32 vcc, 2, %s' % v(vN))
    a('s_mov_b64 %s, exec' % s(S_EXS, 2))
    for k in range(14): a('v_mov_b32 %s, 0' % v(vA1 + k))
    a('s_mov_b64 exec, vcc')
    for q in range(7):
        a('ds_read_b64 %s, %s offset:%d' % (v(vA1 + 2 * q, 2), v(vT + 1), 32 * q))
    a('s_mov_b64 exec, %s' % s(S_EXS, 2))
    for k in range(16): a('v_mov_b32 %s, 0' % v(vAC + k))
    a('s_waitcnt lgkmcnt(0)')
    stamp(1)
    for q in range(7):
        a('s_waitcnt vmcnt(%d)' % (24 - 4 * q))
        bb = vB1 + 8 * (q & 1)
        for m in range(2):
            ra = vW + (4 * q + 2 * m) * 2; rb_ = ra + 2
            a('v_perm_b32 %s, %s, %s, %s' % (v(bb + 0 + m), v(rb_), v(ra), s(S_LO)))
            a('v_perm_b32 %s, %s, %s, %s' % (v(bb + 2 + m), v(rb_), v(ra), s(S_HI)))
            a('v_perm_b32 %s, %s, %s, %s' % (v(bb + 4 + m), v(rb_ + 1), v(ra + 1), s(S_LO)))
            a('v_perm_b32 %s, %s, %s, %s' % (v(bb + 6 + m), v(rb_ + 1), v(ra + 1), s(S_HI)))
        for jj in range(4):
            a('v_mfma_f32_16x16x16_bf16 %s, %s, %s, %s' % (v(vAC + 4 * jj, 4), v(vA1 + 2 * q, 2), v(bb + 2 * jj, 2), v(vAC + 4 * jj, 4)))
    def publish4(acc, vaddr, sbstr, vtmp):
        for b in range(2):
            for jj in range(4):
                a('v_min_u32 %s, -2, %s' % (v(vtmp + 4 * b + jj), v(acc + 4 * jj + b)))
        a('v_add_u32 %s, %s, %s' % (v(vaddr + 1), sbstr, v(vaddr)))
        a('s_mov_b64 exec, 0xffff')
        a('global_store_dwordx4 %s, %s, %s sc1' % (v(vaddr), v(vtmp, 4), s(S_WS, 2)))
        a('global_store_dwordx4 %s, %s, %s sc1' % (v(vaddr + 1), v(vtmp + 4, 4), s(S_WS, 2)))
        a('s_mov_b64 exec, -1')
    a('v_lshlrev_b32 %s, 4, %s' % (v(vT), v(vN)))
    a('v_add_u32 %s, %s, %s' % (v(vT), s(sOutB), v(vT)))
    lds_wait(VL, C_CLR, 1, vT + 2)
    publish4(vAC, vT, s(sBStr), vB1)
    stamp(2)
    a('s_branch L_s1_done')
    a.label('L_s1_skip')
    a('s_barrier')
    a.label('L_s1_done')
    a('s_cmp_eq_u32 %s, 4' % s(S_W))
    a('s_cbranch_scc0 L_qk')
    lds_wait(VL, C_CLR, 1, vT + 2)
    a('ds_read_b64 %s, %s offset:%d' % (v(vT + 2, 2), v(VL), TT))
    a('v_and_b32 %s, 31, v0' % v(vT))
    a('s_lshl_b32 %s, %s, 5' % (s(S_T0), s(S_G)))
    a('v_add_u32 %s, %s, %s' % (v(vT), s(S_T0), v(vT)))
    a('v_lshlrev_b32 %s, 7, %s' % (v(vT), v(vT)))
    a('v_add_u32 %s, %d, %s' % (v(vT), FLAGS, v(vT)))
    a('s_waitcnt lgkmcnt(0)')
    def poll_flags(vaddr, vexp, vdat, lab):
        a('s_mov_b32 %s, 0' % s(S_CNT))
        a.label(lab)
        a('global_load_dwordx2 %s, %s, %s sc1' % (v(vdat, 2), v(vaddr), s(S_WS, 2)))
        a('s_add_u32 %s, %s, 1' % (s(S_CNT), s(S_CNT)))
        a('s_waitcnt vmcnt(0)')
        a('v_and_b32 %s, -16, %s' % (v(vdat), v(vdat)))
        a('v_xor_b32 %s, %s, %s' % (v(vdat), v(vdat), v(vexp)))
        a('v_xor_b32 %s, %s, %s' % (v(vdat + 1), v(vdat + 1), v(vexp + 1)))
        a('v_or_b32 %s, %s, %s' % (v(vdat), v(vdat), v(vdat + 1)))
        a('v_cmp_ne_u32 vcc, 0, %s' % v(vdat))
        a('s_cmp_eq_u64 vcc, 0')
        a('s_cbranch_scc1 %s_d' % lab)
        a('s_cmp_lt_u32 %s, %d' % (s(S_CNT), POLL_MAX))
        a('s_cbranch_scc1 %s' % lab)
        a.label(lab + '_d')
    poll_flags(vT, vT + 2, vT + 4, 'L_pf4')
    lds_signal(VL, C_F, VONE)
    stamp(3)
    a('s_lshl_b32 %s, %s, 1' % (s(S_T0), s(S_G)))
    a('s_add_u32 %s, %s, %s' % (s(S_T0), s(S_T0), s(S_B)))
    a('s_lshl_b32 %s, %s, 13' % (s(S_T0), s(S_T0)))
    a('s_add_u32 %s, %s, %d' % (s(S_T0), s(S_T0), QP))
    a('v_lshlrev_b32 %s, 5, v0' % v(vT))
    a('v_add_u32 %s, %s, %s' % (v(vT), s(S_T0), v(vT)))
    a('v_add_u32 %s, 4096, %s' % (v(vT + 1), v(vT)))
    vG = vW
    def check_empty(base, n, vtmp, lab_retry, lab_done):
        a('v_max3_u32 %s, %s, %s, %s' % (v(vtmp), v(base), v(base + 1), v(base + 2)))
        k = 3
        while k + 1 < n:
            a('v_max3_u32 %s, %s, %s, %s' % (v(vtmp), v(vtmp), v(base + k), v(base + k + 1))); k += 2
        if k < n: a('v_max_u32 %s, %s, %s' % (v(vtmp), v(vtmp), v(base + k)))
        a('v_cmp_eq_u32 vcc, -1, %s' % v(vtmp))
        a('s_cmp_eq_u64 vcc, 0')
        a('s_cbranch_scc1 %s' % lab_done)
        a('s_cmp_lt_u32 %s, %d' % (s(S_CNT), POLL_MAX))
        a('s_cbranch_scc1 %s' % lab_retry)
        a.label(lab_done)
    a('s_mov_b32 %s, 0' % s(S_CNT))
    a.label('L_qg')
    for rb in range(4):
        for hh in range(2):
            a('global_load_dwordx4 %s, %s, %s offset:%d sc1' % (v(vG + 8 * rb + 4 * hh, 4), v(vT + (rb >> 1)), s(S_WS, 2), (rb & 1) * 2048 + 16 * hh))
    a('s_add_u32 %s, %s, 1' % (s(S_CNT), s(S_CNT)))
    a('s_waitcnt vmcnt(0)')
    check_empty(vG, 32, vT + 2, 'L_qg', 'L_qg_d')
    for k in range(8):
        a('v_add_f32 %s, %s, %s' % (v(vG + k), v(vG + k), v(vG + 8 + k)))
        a('v_add_f32 %s, %s, %s' % (v(vG + 16 + k), v(vG + 16 + k), v(vG + 24 + k)))
    for k in range(8):
        a('v_add_f32 %s, %s, %s' % (v(vG + k), v(vG + k), v(vG + 16 + k)))
    for k in range(4):
        a('v_cvt_pk_bf16_f32 %s, %s, %s' % (v(vG + 8 + k), v(vG + 2 * k), v(vG + 2 * k + 1)))
    a('v_lshlrev_b32 %s, 4, v0' % v(vT))
    a('v_add_u32 %s, %d, %s' % (v(vT), L0 + QB, v(vT)))
    a('ds_write_b128 %s, %s' % (v(vT), v(vG + 8, 4)))
    a('s_waitcnt lgkmcnt(0)')
    lds_signal(VL, C_Q, VONE)
    stamp(4)

    a.label('L_qk')
    vN, vGL = 3, 4
    vQ = 16
    vAD = 48
    vKB = 56
    vD = 120
    vT = 136
    a('v_and_b32 %s, 15, v0' % v(vN))
    a('v_lshrrev_b32 %s, 4, v0' % v(vGL))
    a('v_and_b32 %s, 3, %s' % (v(vT), v(vN)))
    a('v_lshlrev_b32 %s, 9, %s' % (v(vT + 1), v(vT)))
    a('v_lshl_add_u32 %s, %s, 4, %s' % (v(vT + 1), v(vGL), v(vT + 1)))
    a('v_add_u32 %s, %d, %s' % (v(vT + 1), L0 + QB, v(vT + 1)))
    a('v_cmp_gt_u32 vcc, 2, %s' % v(vT))
    a('s_mov_b64 %s, vcc' % s(S_P + 8, 2))
    a('v_and_b32 %s, 3, %s' % (v(vT + 2), v(vN)))
    a('v_xor_b32 %s, %s, %s' % (v(vT + 2), v(vT + 2), v(vGL)))
    a('v_and_b32 %s, 12, %s' % (v(vT + 3), v(vN)))
    a('v_or_b32 %s, %s, %s' % (v(vT + 2), v(vT + 2), v(vT + 3)))
    a('v_lshlrev_b32 %s, 4, %s' % (v(vT + 2), v(vT + 2)))
    a('v_lshl_add_u32 %s, %s, 9, %s' % (v(vT + 2), v(vN), v(vT + 2)))
    a('s_sub_u32 %s, %s, 4' % (s(S_P + 10), s(S_W)))
    a('s_lshl_b32 %s, %s, 15' % (s(S_T0), s(S_P + 10)))
    a('v_add_u32 %s, %s, %s' % (v(vT + 2), s(S_T0), v(vT + 2)))
    for js in range(8):
        a('v_xor_b32 %s, %d, %s' % (v(vAD + js), 64 * js, v(vT + 2)))
    for k in range(32): a('v_mov_b32 %s, 0' % v(vQ + k))
    for k in range(16): a('v_mov_b32 %s, 0' % v(vD + k))
    lds_wait(VL, C_Q, 1, vT + 3)
    a('s_mov_b64 exec, %s' % s(S_P + 8, 2))
    for js in range(8):
        a('ds_read_b128 %s, %s offset:%d' % (v(vQ + 4 * js, 4), v(vT + 1), 64 * js))
    a('s_mov_b64 exec, -1')
    lds_wait(VL, C_K, 4, vT + 3)
    stamp(5, True)
    def ktile(t):
        for js in range(8):
            a('ds_read_b128 %s, %s offset:%d' % (v(vKB + 32 * (t & 1) + 4 * js, 4), v(vAD + js), t * 8192))
    ktile(0)
    for t in range(4):
        if t < 3:
            ktile(t + 1)
            a('s_waitcnt lgkmcnt(8)')
        else:
            a('s_waitcnt lgkmcnt(0)')
        for js in range(8):
            a('v_mfma_f32_16x16x32_bf16 %s, %s, %s, %s' % (v(vD + 4 * t, 4), v(vQ + 4 * js, 4), v(vKB + 32 * (t & 1) + 4 * js, 4), v(vD + 4 * t, 4)))
    vS0, vS1 = vT + 4, vT + 5
    a('v_cmp_eq_u32 %s, 1, %s' % (s(S_T0, 2), v(vGL)))
    a('v_cmp_eq_u32 %s, 2, %s' % (s(S_T0 + 2, 2), v(vGL)))
    a('v_cmp_eq_u32 %s, 3, %s' % (s(S_T0 + 4, 2), v(vGL)))
    for h in range(2):
        d = vS0 + h
        a('v_cndmask_b32 %s, %s, %s, %s' % (v(d), v(vD + h), v(vD + 4 + h), s(S_T0, 2)))
        a('v_cndmask_b32 %s, %s, %s, %s' % (v(d), v(d), v(vD + 8 + h), s(S_T0 + 2, 2)))
        a('v_cndmask_b32 %s, %s, %s, %s' % (v(d), v(d), v(vD + 12 + h), s(S_T0 + 4, 2)))
    a('v_cvt_pk_bf16_f32 %s, %s, %s' % (v(vT + 6), v(vS0), v(vS1)))
    a('v_lshlrev_b32 %s, 16, %s' % (v(vS0), v(vT + 6)))
    a('v_and_b32 %s, 0xffff0000, %s' % (v(vS1), v(vT + 6)))
    a('v_mul_f32 %s, 0x3d800000, %s' % (v(vS0), v(vS0)))
    a('v_mul_f32 %s, 0x3d800000, %s' % (v(vS1), v(vS1)))
    vM0, vM1 = vT + 8, vT + 9
    a('v_mov_b32 %s, %s' % (v(vM0), v(vS0)))
    a('v_mov_b32 %s, %s' % (v(vM1), v(vS1)))
    for m in ('quad_perm:[1,0,3,2]', 'quad_perm:[2,3,0,1]', 'row_half_mirror', 'row_mirror'):
        for r in (vM0, vM1):
            a('v_max_f32_dpp %s, %s, %s %s row_mask:0xf bank_mask:0xf' % (v(r), v(r), v(r), m))
    for r in (vM0, vM1): red_x16('v_max_f32', r, vT + 7)
    for r in (vM0, vM1): red_x32('v_max_f32', r, vT + 7)
    a('s_lshl_b32 %s, %s, 3' % (s(S_T0), s(S_P + 10)))
    a('v_add_u32 %s, %s, %s' % (v(vT + 13), s(S_T0), v(VL)))
    a('s_mov_b64 exec, 1')
    a('ds_write_b64 %s, %s offset:%d' % (v(vT + 13), v(vM0, 2), MX))
    a('s_waitcnt lgkmcnt(0)')
    a('ds_add_u32 %s, %s offset:%d' % (v(VL), v(VONE), C_M))
    a('s_mov_b64 exec, -1')
    lds_wait(VL, C_M, 4, vT + 10)
    a('ds_read_b128 %s, %s offset:%d' % (v(vKB, 4), v(VL), MX))
    a('ds_read_b128 %s, %s offset:%d' % (v(vKB + 4, 4), v(VL), MX + 16))
    a('s_waitcnt lgkmcnt(0)')
    for h in range(2):
        a('v_max3_f32 %s, %s, %s, %s' % (v(vM0 + h), v(vKB + h), v(vKB + 2 + h), v(vKB + 4 + h)))
        a('v_max_f32 %s, %s, %s' % (v(vM0 + h), v(vM0 + h), v(vKB + 6 + h)))
    for h in range(2):
        a('v_sub_f32 %s, %s, %s' % (v(vS0 + h), v(vS0 + h), v(vM0 + h)))
        a('v_mul_f32 %s, 0x%x, %s' % (v(vS0 + h), LOG2E, v(vS0 + h)))
        a('v_exp_f32 %s, %s' % (v(vS0 + h), v(vS0 + h)))
    a('v_lshrrev_b32 %s, 2, %s' % (v(vT + 10), v(vN)))
    a('v_and_b32 %s, 1, %s' % (v(vT + 11), v(vN)))
    a('v_lshl_add_u32 %s, %s, 1, %s' % (v(vT + 10), v(vT + 10), v(vT + 11)))
    a('v_lshlrev_b32 %s, 4, %s' % (v(vT + 10), v(vT + 10)))
    a('s_lshl_b32 %s, %s, 2' % (s(S_T0), s(S_P + 10)))
    a('v_add3_u32 %s, %s, %s, %s' % (v(vT + 10), v(vT + 10), s(S_T0), v(vGL)))
    a('v_bfe_u32 %s, %s, 1, 1' % (v(vT + 11), v(vN)))
    a('v_lshl_add_u32 %s, %s, 1, %s' % (v(vT + 10), v(vT + 10), v(vT + 11)))
    a('v_lshlrev_b32 %s, 1, %s' % (v(vT + 10), v(vT + 10)))
    a('v_add_u32 %s, %d, %s' % (v(vT + 10), L0 + PP, v(vT + 10)))
    a('v_cvt_pk_bf16_f32 %s, %s, %s' % (v(vT + 11), v(vS0), v(vS1)))
    a('ds_write_b16 %s, %s' % (v(vT + 10), v(vT + 11)))
    a('ds_write_b16_d16_hi %s, %s offset:512' % (v(vT + 10), v(vT + 11)))
    for m in ('quad_perm:[1,0,3,2]', 'quad_perm:[2,3,0,1]', 'row_half_mirror', 'row_mirror'):
        for r in (vS0, vS1):
            a('v_add_f32_dpp %s, %s, %s %s row_mask:0xf bank_mask:0xf' % (v(r), v(r), v(r), m))
    for r in (vS0, vS1): red_x16('v_add_f32', r, vT + 12)
    for r in (vS0, vS1): red_x32('v_add_f32', r, vT + 12)
    a('s_mov_b64 exec, 1')
    a('ds_write_b64 %s, %s offset:%d' % (v(vT + 13), v(vS0, 2), MS))
    a('s_waitcnt lgkmcnt(0)')
    a('ds_add_u32 %s, %s offset:%d' % (v(VL), v(VONE), C_P))
    a('s_mov_b64 exec, -1')
    stamp(6)
    a('s_cmp_eq_u32 %s, 7' % s(S_W))
    a('s_cbranch_scc1 L_w7b')
    a('s_cmp_eq_u32 %s, 6' % s(S_W))
    a('s_cbranch_scc1 L_w6b')
    stamps_out(16)
    a('s_endpgm')

    a.label('L_w7')
    vT = 6
    vE = 32
    a('v_mov_b32 %s, 0' % v(vT))
    a('v_mov_b32 %s, 0' % v(vT + 1))
    a('v_lshlrev_b32 %s, 2, v0' % v(vT + 2))
    a('v_add_u32 %s, %d, %s' % (v(vT + 2), L0, v(vT + 2)))
    a('s_mov_b32 exec_lo, -1'); a('s_mov_b32 exec_hi, 0')
    a('ds_write_b32 %s, %s' % (v(vT + 2), v(vT)))
    a('s_mov_b64 exec, -1')
    for k in range(4): a('v_mov_b32 %s, -1' % v(vE + k))
    a('s_waitcnt lgkmcnt(0)')
    a('global_load_dwordx2 %s, %s, %s sc1' % (v(vT + 4, 2), v(vT), s(S_WS, 2)))
    a('s_barrier')
    sA, sB_ = S_P, S_P + 1
    a('s_and_b32 %s, %s, 7' % (s(S_T0), s(S_J)))
    a('s_lshr_b32 %s, %s, 3' % (s(S_T0 + 1), s(S_J)))
    a('s_lshl_b32 %s, %s, 3' % (s(sA), s(S_G)))
    a('s_add_u32 %s, %s, %s' % (s(sA), s(sA), s(S_T0 + 1)))
    a('s_lshl_b32 %s, %s, 3' % (s(sA), s(sA)))
    a('s_add_u32 %s, %s, %s' % (s(sA), s(sA), s(S_T0)))
    a('s_lshl_b32 %s, %s, 8' % (s(sA), s(sA)))
    a('s_add_u32 %s, %s, %d' % (s(sA), s(sA), QP))
    a('s_lshl_b32 %s, %s, 5' % (s(sB_), s(S_G)))
    a('s_add_u32 %s, %s, %s' % (s(sB_), s(sB_), s(S_J)))
    a('s_lshl_b32 %s, %s, 9' % (s(sB_), s(sB_)))
    a('s_add_u32 %s, %s, %d' % (s(sB_), s(sB_), GU))
    a('v_and_b32 %s, 15, v0' % v(vT + 6))
    a('v_lshlrev_b32 %s, 4, %s' % (v(vT + 6), v(vT + 6)))
    a('v_bfe_u32 %s, v0, 4, 1' % v(vT + 7))
    a('v_lshlrev_b32 %s, 13, %s' % (v(vT + 8), v(vT + 7)))
    a('v_add3_u32 %s, %s, %s, %s' % (v(vT + 8), v(vT + 8), v(vT + 6), s(sA)))
    a('v_lshlrev_b32 %s, 8, %s' % (v(vT + 9), v(vT + 7)))
    a('v_add3_u32 %s, %s, %s, %s' % (v(vT + 9), v(vT + 9), v(vT + 6), s(sB_)))
    a('v_cmp_gt_u32 vcc, 32, v0')
    a('v_cndmask_b32 %s, %s, %s, vcc' % (v(vT + 8), v(vT + 9), v(vT + 8)))
    a('global_store_dwordx4 %s, %s, %s sc1' % (v(vT + 8), v(vE, 4), s(S_WS, 2)))
    a('s_lshl_b32 %s, %s, 7' % (s(sA), s(S_G)))
    a('s_add_u32 %s, %s, %s' % (s(sA), s(sA), s(S_J)))
    a('s_lshl_b32 %s, %s, 9' % (s(sA), s(sA)))
    a('s_add_u32 %s, %s, %d' % (s(sA), s(sA), OP))
    a('v_lshrrev_b32 %s, 5, v0' % v(vT + 10))
    a('v_lshlrev_b32 %s, 14, %s' % (v(vT + 10), v(vT + 10)))
    a('v_and_b32 %s, 31, v0' % v(vT + 11))
    a('v_lshl_add_u32 %s, %s, 4, %s' % (v(vT + 10), v(vT + 11), v(vT + 10)))
    a('v_add_u32 %s, %s, %s' % (v(vT + 10), s(sA), v(vT + 10)))
    a('v_add_u32 %s, 32768, %s' % (v(vT + 12), v(vT + 10)))
    a('global_store_dwordx4 %s, %s, %s sc1' % (v(vT + 10), v(vE, 4), s(S_WS, 2)))
    a('global_store_dwordx4 %s, %s, %s sc1' % (v(vT + 12), v(vE, 4), s(S_WS, 2)))
    a('s_lshl_b32 %s, %s, 5' % (s(sA), s(S_G)))
    a('s_add_u32 %s, %s, %s' % (s(sA), s(sA), s(S_J)))
    a('s_lshl_b32 %s, %s, 4' % (s(sA), s(sA)))
    a('s_add_u32 %s, %s, %d' % (s(S_P + 2), s(sA), ML))
    a('v_mov_b32 %s, %s' % (v(vT + 13), s(S_P + 2)))
    a('s_mov_b64 exec, 1')
    a('global_store_dwordx4 %s, %s, %s sc1' % (v(vT + 13), v(vE, 4), s(S_WS, 2)))
    a('s_mov_b64 exec, -1')
    sQ, sC = S_P + 3, S_P + 4
    a('s_mul_i32 %s, %s, 37' % (s(sQ), s(S_J)))
    a('s_lshr_b32 %s, %s, 8' % (s(sQ), s(sQ)))
    a('s_mul_i32 %s, %s, 7' % (s(sC), s(sQ)))
    a('s_sub_u32 %s, %s, %s' % (s(sC), s(S_J), s(sC)))
    a('s_cmp_ge_u32 %s, 28' % s(S_J))
    a('s_cbranch_scc1 L_clr_done')
    sYP, sFP = S_P + 5, S_P + 6
    a('s_lshl_b32 %s, %s, 3' % (s(sYP), s(sC)))
    a('s_add_u32 %s, %s, %s' % (s(sYP), s(sYP), s(S_G)))
    a('s_lshl_b32 %s, %s, 2' % (s(sYP), s(sYP)))
    a('s_add_u32 %s, %s, %s' % (s(sYP), s(sYP), s(sQ)))
    a('s_lshl_b32 %s, %s, 9' % (s(sYP), s(sYP)))
    a('s_add_u32 %s, %s, %d' % (s(sYP), s(sYP), YP))
    a('s_mul_i32 %s, %s, 28' % (s(sFP), s(sC)))
    a('s_lshl_b32 %s, %s, 2' % (s(S_T0), s(S_G)))
    a('s_add_u32 %s, %s, %s' % (s(sFP), s(sFP), s(S_T0)))
    a('s_add_u32 %s, %s, %s' % (s(sFP), s(sFP), s(sQ)))
    a('s_lshl_b32 %s, %s, 9' % (s(sFP), s(sFP)))
    a('s_add_u32 %s, %s, %d' % (s(sFP), s(sFP), FP))
    a('v_lshlrev_b32 %s, 4, %s' % (v(vT + 11), v(vT + 11)))
    a('v_add_u32 %s, %s, %s' % (v(vT + 8), s(sYP), v(vT + 11)))
    a('v_add_u32 %s, %s, %s' % (v(vT + 9), s(sFP), v(vT + 11)))
    a('v_cndmask_b32 %s, %s, %s, vcc' % (v(vT + 8), v(vT + 9), v(vT + 8)))
    a('s_cmp_lt_u32 %s, 7' % s(S_G))
    a('s_cselect_b32 exec_hi, -1, 0')
    a('global_store_dwordx4 %s, %s, %s sc1' % (v(vT + 8), v(vE, 4), s(S_WS, 2)))
    a('s_mov_b64 exec, -1')
    a.label('L_clr_done')
    a('s_waitcnt vmcnt(0)')
    a('v_readfirstlane_b32 %s, %s' % (s(S_T0), v(vT + 4)))
    a('v_readfirstlane_b32 %s, %s' % (s(S_T0 + 1), v(vT + 5)))
    a('s_add_u32 %s, %s, 1' % (s(S_P + 8), s(S_T0)))
    a('s_addc_u32 %s, %s, 0' % (s(S_P + 9), s(S_T0 + 1)))
    a('s_lshl_b64 %s, %s, 4' % (s(S_TL, 2), s(S_P + 8, 2)))
    a('s_getreg_b32 %s, hwreg(HW_REG_XCC_ID, 0, 4)' % s(S_T0 + 2))
    a('s_or_b32 %s, %s, %s' % (s(S_T0 + 2), s(S_T0 + 2), s(S_TL)))
    a('v_mov_b32 %s, %s' % (v(vT), s(S_T0 + 2)))
    a('v_mov_b32 %s, %s' % (v(vT + 1), s(S_TH)))
    a('s_lshl_b32 %s, %s, 5' % (s(sA), s(S_G)))
    a('s_add_u32 %s, %s, %s' % (s(sA), s(sA), s(S_J)))
    a('s_lshl_b32 %s, %s, 7' % (s(sA), s(sA)))
    a('s_add_u32 %s, %s, %d' % (s(sA), s(sA), FLAGS))
    a('v_mov_b32 %s, %s' % (v(vT + 2), s(sA)))
    a('v_mov_b32 %s, %s' % (v(vT + 4), s(S_TL)))
    a('v_mov_b32 %s, %s' % (v(vT + 5), s(S_TH)))
    a('v_mov_b32 %s, %s' % (v(vT + 6), s(S_P + 8)))
    a('v_mov_b32 %s, %s' % (v(vT + 7), s(S_P + 9)))
    a('s_mov_b64 exec, 1')
    a('global_store_dwordx2 %s, %s, %s sc1' % (v(vT + 2), v(vT, 2), s(S_WS, 2)))
    a('ds_write_b64 %s, %s offset:%d' % (v(VL), v(vT + 4, 2), TT))
    a('ds_write_b64 %s, %s offset:%d' % (v(VL), v(vT + 6, 2), TT + 8))
    a('s_waitcnt lgkmcnt(0)')
    a('ds_add_u32 %s, %s offset:%d' % (v(VL), v(VONE), C_CLR))
    a('s_mov_b64 exec, -1')
    stamp(1)
    a('s_branch L_qk')

    def blk_loads(vraw, voff, srd, ngroups, rowfn, ssoff):
        for q in range(ngroups):
            for kk in range(8):
                a('s_add_u32 %s, %s, %d' % (s(ssoff), s(S_P + 12), rowfn(q, kk) * 896))
                a('buffer_load_dwordx2 %s, %s, %s, %s offen %s' % (v(vraw + 16 * (q + 1) + 2 * kk, 2), v(voff), s(srd, 4), s(ssoff), cfg.nt))
    def blk_perm(vraw, q):
        src = vraw + 16 * (q + 1); dst = vraw + 16 * q
        for m in range(4):
            ra = src + 4 * m; rb_ = ra + 2
            a('v_perm_b32 %s, %s, %s, %s' % (v(dst + 0 + m), v(rb_), v(ra), s(S_LO)))
            a('v_perm_b32 %s, %s, %s, %s' % (v(dst + 4 + m), v(rb_), v(ra), s(S_HI)))
            a('v_perm_b32 %s, %s, %s, %s' % (v(dst + 8 + m), v(rb_ + 1), v(ra + 1), s(S_LO)))
            a('v_perm_b32 %s, %s, %s, %s' % (v(dst + 12 + m), v(rb_ + 1), v(ra + 1), s(S_HI)))

    a.label('L_w7b')
    vT = 6
    vRaw = 16
    vCo = 96
    vGa = 112
    vAo = 176
    vAc = 192
    vT2 = 208
    lds_wait(VL, C_P, 4, vT)
    a('ds_read_b128 %s, %s offset:%d' % (v(vT2, 4), v(VL), MX))
    a('ds_read_b128 %s, %s offset:%d' % (v(vT2 + 4, 4), v(VL), MX + 16))
    a('ds_read_b128 %s, %s offset:%d' % (v(vT2 + 8, 4), v(VL), MS))
    a('ds_read_b128 %s, %s offset:%d' % (v(vT2 + 12, 4), v(VL), MS + 16))
    a('s_waitcnt lgkmcnt(0)')
    for h in range(2):
        a('v_max3_f32 %s, %s, %s, %s' % (v(vT + 2 * h), v(vT2 + h), v(vT2 + 2 + h), v(vT2 + 4 + h)))
        a('v_max_f32 %s, %s, %s' % (v(vT + 2 * h), v(vT + 2 * h), v(vT2 + 6 + h)))
        a('v_add_f32 %s, %s, %s' % (v(vT + 2 * h + 1), v(vT2 + 8 + h), v(vT2 + 10 + h)))
        a('v_add_f32 %s, %s, %s' % (v(vT + 4), v(vT2 + 12 + h), v(vT2 + 14 + h)))
        a('v_add_f32 %s, %s, %s' % (v(vT + 2 * h + 1), v(vT + 2 * h + 1), v(vT + 4)))
    for k in range(4): a('v_min_u32 %s, -2, %s' % (v(vT + k), v(vT + k)))
    a('v_mov_b32 %s, %s' % (v(vT + 4), s(S_P + 2)))
    a('s_mov_b64 exec, 1')
    a('global_store_dwordx4 %s, %s, %s sc1' % (v(vT + 4), v(vT, 4), s(S_WS, 2)))
    a('s_mov_b64 exec, -1')
    stamp(2)
    a('s_cmp_ge_u32 %s, 28' % s(S_J))
    a('s_cbranch_scc1 L_w7_end')
    vN, vGL, vOff = 3, 4, 5
    a('v_and_b32 %s, 15, v0' % v(vN))
    a('v_lshrrev_b32 %s, 4, v0' % v(vGL))
    a('v_and_b32 %s, 1, %s' % (v(vOff), v(vGL)))
    a('v_lshlrev_b32 %s, 6, %s' % (v(vOff), v(vOff)))
    a('v_lshrrev_b32 %s, 1, %s' % (v(vT), v(vGL)))
    a('v_add_u32 %s, %s, %s' % (v(vOff), v(vOff), v(vT)))
    a('v_mul_u32_u24 %s, 896, %s' % (v(vOff), v(vOff)))
    a('v_lshl_add_u32 %s, %s, 3, %s' % (v(vOff), v(vN), v(vOff)))
    a('s_lshl_b32 %s, %s, 7' % (s(S_T0), s(sC)))
    a('v_add_u32 %s, %s, %s' % (v(vOff), s(S_T0), v(vOff)))
    a('s_lshl_b32 %s, %s, 2' % (s(S_P + 12), s(S_G)))
    a('s_add_u32 %s, %s, %s' % (s(S_P + 12), s(S_P + 12), s(sQ)))
    a('s_mul_i32 %s, %s, %d' % (s(S_P + 12), s(S_P + 12), 128 * 896))
    a('s_mov_b32 %s, %s' % (s(S_SRD), s(S_WO)))
    a('s_mov_b32 %s, %s' % (s(S_SRD + 1), s(S_WO + 1)))
    a('s_mov_b32 %s, 3670016' % s(S_SRD + 2))
    a('s_mov_b32 %s, 0x00020000' % s(S_SRD + 3))
    blk_loads(vRaw, vOff, S_SRD, 4, lambda q, kk: 8 * kk + 2 * q, S_P + 13)
    a('v_and_b32 %s, 31, v0' % v(vT))
    a('v_lshlrev_b32 %s, 4, %s' % (v(vT), v(vT)))
    a('s_lshl_b32 %s, %s, 9' % (s(S_T0), s(S_G)))
    a('s_lshr_b32 %s, %s, 1' % (s(S_T0 + 1), s(sQ)))
    a('s_lshl_b32 %s, %s, 3' % (s(S_T0 + 1), s(S_T0 + 1)))
    a('s_add_u32 %s, %s, %s' % (s(S_T0), s(S_T0), s(S_T0 + 1)))
    a('s_add_u32 %s, %s, %d' % (s(S_T0), s(S_T0), ML))
    a('v_add_u32 %s, %s, %s' % (v(vT), s(S_T0), v(vT)))
    a('s_mov_b32 %s, 0' % s(S_CNT))
    a.label('L_ml')
    a('global_load_dwordx2 %s, %s, %s sc1' % (v(vT + 2, 2), v(vT), s(S_WS, 2)))
    a('s_add_u32 %s, %s, 1' % (s(S_CNT), s(S_CNT)))
    a('s_waitcnt vmcnt(0)')
    a('v_max_u32 %s, %s, %s' % (v(vT + 4), v(vT + 2), v(vT + 3)))
    a('v_cmp_eq_u32 vcc, -1, %s' % v(vT + 4))
    a('s_cmp_eq_u64 vcc, 0')
    a('s_cbranch_scc1 L_ml_d')
    a('s_cmp_lt_u32 %s, %d' % (s(S_CNT), POLL_MAX))
    a('s_cbranch_scc1 L_ml')
    a.label('L_ml_d')
    a('v_mov_b32 %s, %s' % (v(vT + 4), v(vT + 2)))
    red16('v_max_f32', vT + 4)
    a('v_sub_f32 %s, %s, %s' % (v(vT + 5), v(vT + 2), v(vT + 4)))
    a('v_mul_f32 %s, 0x%x, %s' % (v(vT + 5), LOG2E, v(vT + 5)))
    a('v_exp_f32 %s, %s' % (v(vT + 5), v(vT + 5)))
    a('v_mul_f32 %s, %s, %s' % (v(vT + 6), v(vT + 5), v(vT + 3)))
    red16('v_add_f32', vT + 6)
    a('v_rcp_f32 %s, %s' % (v(vT + 7), v(vT + 6)))
    a('v_mul_f32 %s, %s, %s' % (v(vT + 8), v(vT + 5), v(vT + 7)))
    a('v_fma_f32 %s, -%s, %s, %s' % (v(vT + 9), v(vT + 8), v(vT + 6), v(vT + 5)))
    a('v_fma_f32 %s, %s, %s, %s' % (v(vT + 8), v(vT + 9), v(vT + 7), v(vT + 8)))
    a('v_and_b32 %s, 31, v0' % v(vT))
    a('v_lshl_add_u32 %s, %s, 2, %s' % (v(vT), v(vT), v(VL)))
    a('ds_write_b32 %s, %s offset:%d' % (v(vT), v(vT + 8), CO))
    a('v_lshrrev_b32 %s, 5, v0' % v(vT + 1))
    a('v_lshl_add_u32 %s, %s, 6, %s' % (v(vT + 1), v(vT + 1), v(VL)))
    for k in range(4):
        a('ds_read_b128 %s, %s offset:%d' % (v(vCo + 4 * k, 4), v(vT + 1), CO + 16 * k))
    for q in range(4): blk_perm(vRaw, q)
    stamp(3)
    a('s_lshl_b32 %s, %s, 2' % (s(S_T0), s(S_G)))
    a('s_add_u32 %s, %s, %s' % (s(S_T0), s(S_T0), s(sQ)))
    a('s_lshl_b32 %s, %s, 14' % (s(S_T0), s(S_T0)))
    a('s_add_u32 %s, %s, %d' % (s(S_T0), s(S_T0), OP))
    a('v_lshrrev_b32 %s, 5, v0' % v(vT))
    a('v_lshlrev_b32 %s, 13, %s' % (v(vT), v(vT)))
    a('v_and_b32 %s, 31, v0' % v(vT + 1))
    a('v_lshl_add_u32 %s, %s, 4, %s' % (v(vT), v(vT + 1), v(vT)))
    a('v_add_u32 %s, %s, %s' % (v(vT), s(S_T0), v(vT)))
    a('v_add_u32 %s, 4096, %s' % (v(vT + 1), v(vT)))
    a('v_lshlrev_b32 %s, 8, %s' % (v(vT + 2), v(vN)))
    a('v_lshl_add_u32 %s, %s, 4, %s' % (v(vT + 2), v(vGL), v(vT + 2)))
    a('v_add_u32 %s, %d, %s' % (v(vT + 2), L0 + OB, v(vT + 2)))
    a('v_lshrrev_b32 %s, 5, v0' % v(vT + 3))
    a('v_lshlrev_b32 %s, 8, %s' % (v(vT + 3), v(vT + 3)))
    a('v_and_b32 %s, 31, v0' % v(vT + 4))
    a('v_lshl_add_u32 %s, %s, 3, %s' % (v(vT + 3), v(vT + 4), v(vT + 3)))
    a('v_add_u32 %s, %d, %s' % (v(vT + 3), L0 + OB, v(vT + 3)))
    for k in range(16): a('v_mov_b32 %s, 0' % v(vAo + k))
    for k in range(16): a('v_mov_b32 %s, 0' % v(vAc + k))
    a('v_cmp_gt_u32 %s, 2, %s' % (s(S_P + 14, 2), v(vN)))
    a('v_lshlrev_b32 %s, 4, %s' % (v(vT + 5), v(vN)))
    a('v_add_u32 %s, %s, %s' % (v(vT + 5), s(sYP), v(vT + 5)))
    a('s_waitcnt lgkmcnt(0)')
    a('s_mov_b32 %s, 0' % s(S_CNT))
    a.label('L_og')
    for sp in range(16):
        a('global_load_dwordx4 %s, %s, %s offset:%d sc1' % (v(vGa + 4 * sp, 4), v(vT + (sp >> 3)), s(S_WS, 2), (sp & 7) * 512))
    a('s_add_u32 %s, %s, 1' % (s(S_CNT), s(S_CNT)))
    for sp in range(16):
        a('s_waitcnt vmcnt(%d)' % (15 - sp))
        for e in range(4):
            if sp == 0: a('v_mul_f32 %s, %s, %s' % (v(vT2 + e), v(vCo), v(vGa + e)))
            else: a('v_fmac_f32 %s, %s, %s' % (v(vT2 + e), v(vCo + sp), v(vGa + 4 * sp + e)))
    a('v_add_f32 %s, %s, %s' % (v(vT2 + 4), v(vT2), v(vT2 + 1)))
    a('v_add_f32 %s, %s, %s' % (v(vT2 + 5), v(vT2 + 2), v(vT2 + 3)))
    a('v_cmp_u_f32 vcc, %s, %s' % (v(vT2 + 4), v(vT2 + 5)))
    a('s_cmp_eq_u64 vcc, 0')
    a('s_cbranch_scc1 L_og_d')
    check_empty(vGa, 64, vT2 + 6, 'L_og', 'L_og_d')
    stamp(4, True)
    a('v_cvt_pk_bf16_f32 %s, %s, %s' % (v(vT2 + 4), v(vT2), v(vT2 + 1)))
    a('v_cvt_pk_bf16_f32 %s, %s, %s' % (v(vT2 + 5), v(vT2 + 2), v(vT2 + 3)))
    a('ds_write_b64 %s, %s' % (v(vT + 3), v(vT2 + 4, 2)))
    a('s_mov_b64 exec, %s' % s(S_P + 14, 2))
    for q in range(4):
        a('ds_read_b128 %s, %s offset:%d' % (v(vAo + 4 * q, 4), v(vT + 2), 64 * q))
    a('s_mov_b64 exec, -1')
    for q in range(4):
        a('s_waitcnt lgkmcnt(%d)' % (3 - q))
        for jj in range(4):
            a('v_mfma_f32_16x16x32_bf16 %s, %s, %s, %s' % (v(vAc + 4 * jj, 4), v(vAo + 4 * q, 4), v(vRaw + 16 * q + 4 * jj, 4), v(vAc + 4 * jj, 4)))
    publish4(vAc, vT + 5, '256', vT2)
    stamp(5)
    a.label('L_w7_end')
    stamps_out(16)
    a('s_endpgm')

    a.label('L_w6')
    a('s_waitcnt lgkmcnt(0)')
    a('s_barrier')
    a('s_branch L_qk')
    a.label('L_w6b')
    a('s_cmp_ge_u32 %s, 7' % s(S_G))
    a('s_cbranch_scc1 L_w6_end')
    a('s_cmp_ge_u32 %s, 30' % s(S_J))
    a('s_cbranch_scc1 L_final')
    a('s_cmp_ge_u32 %s, 28' % s(S_J))
    a('s_cbranch_scc1 L_w6_end')
    vN, vGL, vOff = 3, 4, 5
    vT = 6; vRaw = 16; vG = 64; vAo = 96; vAc = 112; vT2 = 128
    sQ, sC = S_P + 3, S_P + 4
    a('s_mul_i32 %s, %s, 37' % (s(sQ), s(S_J)))
    a('s_lshr_b32 %s, %s, 8' % (s(sQ), s(sQ)))
    a('s_mul_i32 %s, %s, 7' % (s(sC), s(sQ)))
    a('s_sub_u32 %s, %s, %s' % (s(sC), s(S_J), s(sC)))
    a('s_lshl_b32 %s, %s, 2' % (s(S_P + 5), s(S_G)))
    a('s_add_u32 %s, %s, %s' % (s(S_P + 5), s(S_P + 5), s(sQ)))
    a('v_and_b32 %s, 15, v0' % v(vN))
    a('v_lshrrev_b32 %s, 4, v0' % v(vGL))
    a('v_lshlrev_b32 %s, 3, %s' % (v(vOff), v(vGL)))
    a('v_mul_u32_u24 %s, 896, %s' % (v(vOff), v(vOff)))
    a('v_lshl_add_u32 %s, %s, 3, %s' % (v(vOff), v(vN), v(vOff)))
    a('s_lshl_b32 %s, %s, 7' % (s(S_T0), s(sC)))
    a('v_add_u32 %s, %s, %s' % (v(vOff), s(S_T0), v(vOff)))
    a('s_mul_i32 %s, %s, %d' % (s(S_P + 12), s(S_P + 5), 64 * 896))
    a('s_mov_b32 %s, %s' % (s(S_SRD), s(S_WD)))
    a('s_mov_b32 %s, %s' % (s(S_SRD + 1), s(S_WD + 1)))
    a('s_mov_b32 %s, 1605632' % s(S_SRD + 2))
    a('s_mov_b32 %s, 0x00020000' % s(S_SRD + 3))
    blk_loads(vRaw, vOff, S_SRD, 2, lambda q, kk: 32 * q + kk, S_P + 13)
    lds_wait(VL, C_F, 1, vT)
    a('s_lshl_b32 %s, %s, 2' % (s(S_T0), s(S_G)))
    a('s_add_u32 %s, %s, %s' % (s(S_T0), s(S_T0), s(sQ)))
    a('s_lshl_b32 %s, %s, 12' % (s(S_T0), s(S_T0)))
    a('s_add_u32 %s, %s, %d' % (s(S_T0), s(S_T0), GU))
    a('v_lshrrev_b32 %s, 5, v0' % v(vT))
    a('v_lshlrev_b32 %s, 8, %s' % (v(vT), v(vT)))
    a('v_and_b32 %s, 31, v0' % v(vT + 1))
    a('v_lshl_add_u32 %s, %s, 3, %s' % (v(vT), v(vT + 1), v(vT)))
    a('v_add_u32 %s, %s, %s' % (v(vT), s(S_T0), v(vT)))
    a('s_mov_b32 %s, 0' % s(S_CNT))
    a.label('L_gu')
    for k in range(8):
        a('global_load_dwordx2 %s, %s, %s offset:%d sc1' % (v(vG + 2 * k, 2), v(vT), s(S_WS, 2), k * 512))
    a('s_add_u32 %s, %s, 1' % (s(S_CNT), s(S_CNT)))
    a('s_waitcnt vmcnt(0)')
    check_empty(vG, 16, vT + 2, 'L_gu', 'L_gu_d')
    for mat in range(2):
        for e in range(2):
            b0 = vG + 8 * mat + e
            a('v_add_f32 %s, %s, %s' % (v(b0), v(b0), v(b0 + 2)))
            a('v_add_f32 %s, %s, %s' % (v(b0 + 4), v(b0 + 4), v(b0 + 6)))
            a('v_add_f32 %s, %s, %s' % (v(b0), v(b0), v(b0 + 4)))
    a('v_cvt_pk_bf16_f32 %s, %s, %s' % (v(vT + 2), v(vG), v(vG + 1)))
    a('v_cvt_pk_bf16_f32 %s, %s, %s' % (v(vT + 3), v(vG + 8), v(vG + 9)))
    a('v_lshlrev_b32 %s, 16, %s' % (v(vT + 4), v(vT + 2)))
    a('v_and_b32 %s, 0xffff0000, %s' % (v(vT + 5), v(vT + 2)))
    a('v_lshlrev_b32 %s, 16, %s' % (v(vT + 6), v(vT + 3)))
    a('v_and_b32 %s, 0xffff0000, %s' % (v(vT + 7), v(vT + 3)))
    a('v_mul_f32 %s, %s, %s' % (v(vT + 4), v(vT + 4), v(vT + 6)))
    a('v_mul_f32 %s, %s, %s' % (v(vT + 5), v(vT + 5), v(vT + 7)))
    a('v_cvt_pk_bf16_f32 %s, %s, %s' % (v(vT + 4), v(vT + 4), v(vT + 5)))
    a('v_lshrrev_b32 %s, 5, v0' % v(vT + 5))
    a('v_lshlrev_b32 %s, 7, %s' % (v(vT + 5), v(vT + 5)))
    a('v_lshl_add_u32 %s, %s, 2, %s' % (v(vT + 5), v(vT + 1), v(vT + 5)))
    a('v_add_u32 %s, %d, %s' % (v(vT + 5), L0 + HB, v(vT + 5)))
    a('ds_write_b32 %s, %s' % (v(vT + 5), v(vT + 4)))
    a('v_lshlrev_b32 %s, 7, %s' % (v(vT + 6), v(vN)))
    a('v_lshl_add_u32 %s, %s, 4, %s' % (v(vT + 6), v(vGL), v(vT + 6)))
    a('v_add_u32 %s, %d, %s' % (v(vT + 6), L0 + HB, v(vT + 6)))
    for k in range(8): a('v_mov_b32 %s, 0' % v(vAo + k))
    for k in range(16): a('v_mov_b32 %s, 0' % v(vAc + k))
    a('v_cmp_gt_u32 vcc, 2, %s' % v(vN))
    a('s_mov_b64 exec, vcc')
    for q in range(2):
        a('ds_read_b128 %s, %s offset:%d' % (v(vAo + 4 * q, 4), v(vT + 6), 64 * q))
    a('s_mov_b64 exec, -1')
    for q in range(2): blk_perm(vRaw, q)
    a('s_waitcnt lgkmcnt(0)')
    for q in range(2):
        for jj in range(4):
            a('v_mfma_f32_16x16x32_bf16 %s, %s, %s, %s' % (v(vAc + 4 * jj, 4), v(vAo + 4 * q, 4), v(vRaw + 16 * q + 4 * jj, 4), v(vAc + 4 * jj, 4)))
    a('s_mul_i32 %s, %s, 28' % (s(S_T0), s(sC)))
    a('s_add_u32 %s, %s, %s' % (s(S_T0), s(S_T0), s(S_P + 5)))
    a('s_lshl_b32 %s, %s, 9' % (s(S_T0), s(S_T0)))
    a('s_add_u32 %s, %s, %d' % (s(S_T0), s(S_T0), FP))
    a('v_lshlrev_b32 %s, 4, %s' % (v(vT + 8), v(vN)))
    a('v_add_u32 %s, %s, %s' % (v(vT + 8), s(S_T0), v(vT + 8)))
    publish4(vAc, vT + 8, '256', vT2)
    stamp(7)
    a.label('L_w6_end')
    stamps_out(16)
    a('s_endpgm')

    a.label('L_final')
    vT = 6; vG = 32; vS = 16; vGate = 20; vX = 24
    sBf = S_P + 3
    a('s_sub_u32 %s, %s, 30' % (s(sBf), s(S_J)))
    lds_wait(VL, C_CLR, 1, vT)
    a('ds_read_b64 %s, %s offset:%d' % (v(vT + 2, 2), v(VL), TT))
    a('s_waitcnt lgkmcnt(0)')
    for k in range(4):
        a('v_add_u32 %s, %d, v0' % (v(vT), 64 * k))
        a('v_lshlrev_b32 %s, 7, %s' % (v(vT), v(vT)))
        a('v_add_u32 %s, %d, %s' % (v(vT), FLAGS, v(vT)))
        poll_flags(vT, vT + 2, vT + 4, 'L_pff%d' % k)
    vN, vSrc = 3, 4
    a('v_and_b32 %s, 15, v0' % v(vN))
    a('v_lshrrev_b32 %s, 4, v0' % v(vSrc))
    a('s_mul_i32 %s, %s, 896' % (s(S_T0), s(sBf)))
    a('s_lshl_b32 %s, %s, 7' % (s(S_T0 + 1), s(S_G)))
    a('s_add_u32 %s, %s, %s' % (s(S_P + 4), s(S_T0), s(S_T0 + 1)))
    a('v_lshlrev_b32 %s, 3, %s' % (v(vX + 2), v(vN)))
    a('v_add_u32 %s, %s, %s' % (v(vX + 2), s(S_P + 4), v(vX + 2)))
    a('global_load_dwordx2 %s, %s, %s' % (v(vX, 2), v(vX + 2), s(S_X, 2)))
    def gather_sum(base_expr_s, nld, lab):
        a('v_lshlrev_b32 %s, 9, %s' % (v(vT), v(vSrc)))
        a('v_lshl_add_u32 %s, %s, 4, %s' % (v(vT), v(vN), v(vT)))
        a('s_lshl_b32 %s, %s, 8' % (s(S_T0 + 2), s(sBf)))
        a('s_add_u32 %s, %s, %s' % (s(S_T0 + 2), s(S_T0 + 2), base_expr_s))
        a('v_add_u32 %s, %s, %s' % (v(vT), s(S_T0 + 2), v(vT)))
        for k in range(1, 4): a('v_add_u32 %s, %d, %s' % (v(vT + 6 + k), 4096 * k, v(vT)))
        a('s_mov_b32 %s, 0' % s(S_CNT))
        a.label(lab)
        for t in range(nld):
            ar = vT if (t >> 1) == 0 else vT + 6 + (t >> 1)
            a('global_load_dwordx4 %s, %s, %s offset:%d sc1' % (v(vG + 4 * t, 4), v(ar), s(S_WS, 2), (t & 1) * 2048))
        a('s_add_u32 %s, %s, 1' % (s(S_CNT), s(S_CNT)))
        a('s_waitcnt vmcnt(0)')
        check_empty(vG, 4 * nld, vT + 1, lab, lab + '_d')
        for e in range(4):
            a('v_add_f32 %s, %s, %s' % (v(vS + e), v(vG + e), v(vG + 4 + e)))
        for t in range(2, nld):
            for e in range(4):
                a('v_add_f32 %s, %s, %s' % (v(vS + e), v(vS + e), v(vG + 4 * t + e)))
        for e in range(4): red_x16('v_add_f32', vS + e, vT + 1 + (e & 1))
        for e in range(4): red_x32('v_add_f32', vS + e, vT + 1 + (e & 1))
        a('v_cvt_pk_bf16_f32 %s, %s, %s' % (v(vT + 1), v(vS), v(vS + 1)))
        a('v_cvt_pk_bf16_f32 %s, %s, %s' % (v(vT + 2), v(vS + 2), v(vS + 3)))
        a('v_lshlrev_b32 %s, 16, %s' % (v(vS), v(vT + 1)))
        a('v_and_b32 %s, 0xffff0000, %s' % (v(vS + 1), v(vT + 1)))
        a('v_lshlrev_b32 %s, 16, %s' % (v(vS + 2), v(vT + 2)))
        a('v_and_b32 %s, 0xffff0000, %s' % (v(vS + 3), v(vT + 2)))
    a('s_mul_i32 %s, %s, %d' % (s(S_P + 5), s(S_G), 28 * 512))
    a('s_add_u32 %s, %s, %d' % (s(S_P + 5), s(S_P + 5), FP))
    gather_sum(s(S_P + 5), 7, 'L_fg')
    for e in range(4):
        a('v_mul_f32 %s, 0x%x, %s' % (v(vT + 1), LOG2E | 0x80000000, v(vS + e)))
        a('v_exp_f32 %s, %s' % (v(vT + 1), v(vT + 1)))
        a('v_add_f32 %s, 1.0, %s' % (v(vT + 1), v(vT + 1)))
        a('v_rcp_f32 %s, %s' % (v(vT + 2), v(vT + 1)))
        a('v_mul_f32 %s, %s, %s' % (v(vT + 3), v(vS + e), v(vT + 2)))
        a('v_fma_f32 %s, -%s, %s, %s' % (v(vT + 4), v(vT + 3), v(vT + 1), v(vS + e)))
        a('v_fma_f32 %s, %s, %s, %s' % (v(vT + 5), v(vT + 4), v(vT + 2), v(vT + 3)))
        a('v_cmp_class_f32 vcc, %s, 0x3' % v(vT + 5)) if False else None
        a('v_cmp_u_f32 vcc, %s, %s' % (v(vT + 5), v(vT + 5)))
        a('v_cndmask_b32 %s, %s, %s, vcc' % (v(vGate + e), v(vT + 5), v(vT + 3)))
    a('v_cvt_pk_bf16_f32 %s, %s, %s' % (v(vT + 1), v(vGate), v(vGate + 1)))
    a('v_cvt_pk_bf16_f32 %s, %s, %s' % (v(vT + 2), v(vGate + 2), v(vGate + 3)))
    a('v_lshlrev_b32 %s, 16, %s' % (v(vGate), v(vT + 1)))
    a('v_and_b32 %s, 0xffff0000, %s' % (v(vGate + 1), v(vT + 1)))
    a('v_lshlrev_b32 %s, 16, %s' % (v(vGate + 2), v(vT + 2)))
    a('v_and_b32 %s, 0xffff0000, %s' % (v(vGate + 3), v(vT + 2)))
    stamp(7)
    a('s_lshl_b32 %s, %s, 14' % (s(S_P + 5), s(S_G)))
    a('s_add_u32 %s, %s, %d' % (s(S_P + 5), s(S_P + 5), YP))
    gather_sum(s(S_P + 5), 8, 'L_yg')
    if cfg.dbg:
        a('s_lshl_b32 %s, %s, 1' % (s(S_T0), s(S_G)))
        a('s_add_u32 %s, %s, %s' % (s(S_T0), s(S_T0), s(sBf)))
        a('s_lshl_b32 %s, %s, 11' % (s(S_T0), s(S_T0)))
        a('s_add_u32 %s, %s, 0x180000' % (s(S_T0), s(S_T0)))
        a('v_lshlrev_b32 %s, 5, v0' % v(vT + 1))
        a('v_add_u32 %s, %s, %s' % (v(vT + 1), s(S_T0), v(vT + 1)))
        a('global_store_dwordx4 %s, %s, %s' % (v(vT + 1), v(vS, 4), s(S_WS, 2)))
        a('global_store_dwordx4 %s, %s, %s offset:16' % (v(vT + 1), v(vGate, 4), s(S_WS, 2)))
        a('s_waitcnt vmcnt(0)')
    for e in range(4): a('v_mul_f32 %s, %s, %s' % (v(vS + e), v(vS + e), v(vGate + e)))
    a('v_cvt_pk_bf16_f32 %s, %s, %s' % (v(vT + 1), v(vS), v(vS + 1)))
    a('v_cvt_pk_bf16_f32 %s, %s, %s' % (v(vT + 2), v(vS + 2), v(vS + 3)))
    for hh in range(2):
        a('v_lshlrev_b32 %s, 16, %s' % (v(vS + 2 * hh), v(vT + 1 + hh)))
        a('v_and_b32 %s, 0xffff0000, %s' % (v(vS + 2 * hh + 1), v(vT + 1 + hh)))
        a('v_lshlrev_b32 %s, 16, %s' % (v(vT + 3), v(vX + hh)))
        a('v_and_b32 %s, 0xffff0000, %s' % (v(vT + 4), v(vX + hh)))
        a('v_add_f32 %s, %s, %s' % (v(vS + 2 * hh), v(vS + 2 * hh), v(vT + 3)))
        a('v_add_f32 %s, %s, %s' % (v(vS + 2 * hh + 1), v(vS + 2 * hh + 1), v(vT + 4)))
    a('v_cvt_pk_bf16_f32 %s, %s, %s' % (v(vT + 8), v(vS), v(vS + 1)))
    a('v_cvt_pk_bf16_f32 %s, %s, %s' % (v(vT + 9), v(vS + 2), v(vS + 3)))
    a('s_mov_b64 exec, 0xffff')
    a('global_store_dwordx2 %s, %s, %s' % (v(vX + 2), v(vT + 8, 2), s(S_OUT, 2)))
    a('s_mov_b64 exec, -1')
    a('s_or_b32 %s, %s, %s' % (s(S_T0), s(S_G), s(sBf)))
    a('s_cmp_lg_u32 %s, 0' % s(S_T0))
    a('s_cbranch_scc1 L_fin_end')
    a('ds_read_b64 %s, %s offset:%d' % (v(vT + 2, 2), v(VL), TT + 8))
    a('v_mov_b32 %s, 0' % v(vT))
    a('s_waitcnt lgkmcnt(0)')
    a('s_mov_b64 exec, 1')
    a('global_store_dwordx2 %s, %s, %s sc1' % (v(vT), v(vT + 2, 2), s(S_WS, 2)))
    a('s_mov_b64 exec, -1')
    a.label('L_fin_end')
    if cfg.stamps:
        a('s_memrealtime %s' % s(S_ST + 2 * 5, 2))
    stamps_out(40)
    a.label('L_end')
    a('s_endpgm')
    return a

def kernel_text(cfg):
    a = gen(cfg)
    name = KNAME + '_kernel'
    t = HEADER
    t += '; @launch grid=(256,1,1) block=(512,1,1) lds=%d\n' % LDS_BYTES
    t += '.amdgcn_target "amdgcn-amd-amdhsa--gfx950"\n.text\n'
    t += '.globl %s\n.p2align 8\n.type %s,@function\n%s:\n' % (name, name, name)
    t += a.text()
    t += '.section .rodata,"a"\n.p2align 6\n.amdhsa_kernel %s\n' % name
    t += '  .amdhsa_next_free_vgpr 256\n  .amdhsa_next_free_sgpr 102\n  .amdhsa_accum_offset 256\n'
    t += '  .amdhsa_group_segment_fixed_size 0\n  .amdhsa_kernarg_size 96\n  .amdhsa_user_sgpr_count 2\n'
    t += '  .amdhsa_user_sgpr_kernarg_segment_ptr 1\n  .amdhsa_system_sgpr_workgroup_id_x 1\n'
    t += '  .amdhsa_float_denorm_mode_32 3\n'
    t += '.end_amdhsa_kernel\n'
    return t

if __name__ == '__main__':
    cfg = Cfg()
    out = 'k.s'
    for arg in sys.argv[1:]:
        if '=' in arg:
            k, val = arg.split('=')
            setattr(cfg, k, type(getattr(cfg, k))(int(val)) if not isinstance(getattr(cfg, k), str) else val)
        else: out = arg
    open(out, 'w').write(kernel_text(cfg))
```
